```python
import torch

def _softmax(x, axis=-1):
    return torch.softmax(x, dim=axis)

def _gelu(x):
    return torch.nn.functional.gelu(x, approximate='tanh')

def _silu(x):
    return torch.nn.functional.silu(x)

def _sigmoid(x):
    return torch.sigmoid(x)

def _layernorm(x, axis=-1, eps=1e-05):
    m = x.mean(dim=axis, keepdim=True)
    v = x.var(dim=axis, keepdim=True, unbiased=False)
    return (x - m) / torch.sqrt(v + eps)

def _scatter_add(tgt, idx, src, axis=0):
    return tgt.clone().index_add_(axis, idx, src)

def _segment_sum(src, seg, n):
    out = torch.zeros((n,) + src.shape[1:], dtype=src.dtype)
    return out.index_add_(0, seg, src)

def _pad(x, pw):
    flat = tuple((v for pair in reversed(pw) for v in pair))
    return torch.nn.functional.pad(x, flat)
kernel_name = 'interleave_layers__ssm_conv_h3__mixer_gmlp__prompt'

def setup_inputs():

    _w = lambda a: (lambda t: t.to(torch.bfloat16) if t.is_floating_point() else t)(torch.as_tensor(a))

    def _A_setup():
        B, S, D = (1, 2048, 640)
        ks = 4
        return {'q': _w((lambda *s: torch.randn(*s, dtype=torch.bfloat16) * 0.05)(B, S, D)), 'k': _w((lambda *s: torch.randn(*s, dtype=torch.bfloat16) * 1.6)(B, S, D)), 'v': _w((lambda *s: torch.randn(*s, dtype=torch.bfloat16) * 1.6)(B, S, D)), 'shift_k': _w((lambda *s: torch.randn(*s, dtype=torch.bfloat16) * 1.6)(D, ks) * 0.5), 'ssm_k': _w((lambda *s: torch.randn(*s, dtype=torch.bfloat16) * 1.6)(D, S) * (1.0 / S ** 0.5)), 'ssm_D': _w((lambda *s: torch.randn(*s, dtype=torch.bfloat16) * 1.6)(D))}
    _A_in = _A_setup()

    def _B_setup():
        B, S, D, F = (1, 2048, 640, 1728)
        Fh = F // 2
        return {'x': _w((lambda *s: torch.randn(*s, dtype=torch.bfloat16) * 0.05)(B, S, D)), 'w_in': _w((lambda *s: torch.randn(*s, dtype=torch.bfloat16) * 1.6)(D, 2 * Fh)), 'w_sp': _w(0.01 * (lambda *s: torch.randn(*s, dtype=torch.bfloat16) * 1.6)(S, S)), 'b_sp': _w(1.0 + 0.01 * (lambda *s: torch.randn(*s, dtype=torch.bfloat16) * 0.2)(S)), 'w_out': _w((lambda *s: torch.randn(*s, dtype=torch.bfloat16) * 0.2)(Fh, D))}
    _B_in = _B_setup()
    return {'A_q': _A_in['q'], 'A_k': _A_in['k'], 'A_v': _A_in['v'], 'A_shift_k': _A_in['shift_k'], 'A_ssm_k': _A_in['ssm_k'], 'A_ssm_D': _A_in['ssm_D'], 'B_x': _B_in['x'], 'B_w_in': _B_in['w_in'], 'B_w_sp': _B_in['w_sp'], 'B_b_sp': _B_in['b_sp'], 'B_w_out': _B_in['w_out']}

def reference(A_q, A_k, A_v, A_shift_k, A_ssm_k, A_ssm_D, B_x, B_w_in, B_w_sp, B_b_sp, B_w_out):

    def _A_ref(q, k, v, shift_k, ssm_k, ssm_D):
        B, S, D = q.shape
        ks = shift_k.shape[-1]
        k_pad = _pad(k, ((0, 0), (ks - 1, 0), (0, 0)))
        k_shift = torch.zeros_like(k)
        for t in range(ks):
            k_shift = k_shift + k_pad[:, t:t + S, :] * shift_k[:, ks - 1 - t][None, None, :]
        kv = k_shift * v
        L = 2 * S
        kv_pad = _pad(kv, ((0, 0), (0, S), (0, 0)))
        kf_pad = _pad(ssm_k, ((0, 0), (0, S)))
        kv_f = (lambda x, axes=(-2, -1): torch.fft.rfft2(x.float(), dim=axes))(kv_pad[:, None, :, :], axes=(1, 2))
        kf_f = (lambda x, axes=(-2, -1): torch.fft.rfft2(x.float(), dim=axes))(kf_pad[:, None, :], axes=(1, 2))
        kf_f = (lambda x, *d: x.permute(*d))(kf_f, 1, 2, 0)
        y_f = kv_f * kf_f[None, :, :, :]
        y = (lambda x, s, axes=(-2, -1): torch.fft.irfft2(x, s=s, dim=axes).to(torch.bfloat16))(y_f, (1, L), axes=(1, 2))[:, 0, :S, :]
        y = y + kv * ssm_D[None, None, :]
        return q * y

    def _B_ref(x, w_in, w_sp, b_sp, w_out):
        B, S, D = x.shape
        F = w_in.shape[-1]
        Fh = F // 2
        z = _gelu(torch.einsum('bsd,df->bsf', x, w_in))
        z1 = z[..., :Fh].clone()
        z2 = _layernorm(z[..., Fh:], axis=-1)
        g = torch.einsum('ts,bsf->btf', w_sp, z2) + b_sp[None, :, None]
        return torch.einsum('bsf,fd->bsd', z1 * g, w_out)
    x = A_q
    x = x + _A_ref(_layernorm(x, axis=-1), A_k, A_v, A_shift_k, A_ssm_k, A_ssm_D)
    x = x + _B_ref(_layernorm(x, axis=-1), B_w_in, B_w_sp, B_b_sp, B_w_out)
    x = x + _A_ref(_layernorm(x, axis=-1), A_k, A_v, A_shift_k, A_ssm_k, A_ssm_D)
    x = x + _B_ref(_layernorm(x, axis=-1), B_w_in, B_w_sp, B_b_sp, B_w_out)
    return x
```

```python
import math, sys

S = 2048; D = 640; F = 1728; FH = 864
NAME = "interleave_layers__ssm_conv_h3__mixer_gmlp__prompt"

A_Q, A_K, A_V, A_SHK, A_SSMK, A_SSMD, B_X, B_WIN, B_WSP, B_BSP, B_WOUT, D_OUT, D_DBG, D_WS = [8*i for i in range(14)]

def al(x, a=4096): return (x + a - 1)//a*a
WS = {}
_off = 0
def ws_alloc(name, nbytes):
    global _off
    WS[name] = _off
    _off = al(_off + nbytes + 4096)
ws_alloc('Y', S*D*2)
ws_alloc('WINT', F*D*2)
ws_alloc('WOUTT', D*FH*2)
ws_alloc('X1', S*D*2)
ws_alloc('XN', S*D*2)
ws_alloc('Z', S*F*2)
ws_alloc('Z2T', FH*S*2)
ws_alloc('H', S*FH*2)
ws_alloc('X2', S*D*2)
ws_alloc('X3', S*D*2)
WS_TOTAL = _off

class Asm:
    def __init__(self):
        self.lines = []
        self.kernels = []
        self.lab = 0
    def __call__(self, s):
        self.lines.append("    " + s)
    def label(self, l):
        self.lines.append(l + ":")
    def newlabel(self, p="L"):
        self.lab += 1
        return "%s_%d" % (p, self.lab)
    def raw(self, s):
        self.lines.append(s)

def begin_kernel(a, name):
    a.raw(".p2align 8")
    a.raw(".type %s,@function" % name)
    a.raw("%s:" % name)

def end_kernel(a, name, nv, ns=102):
    a("s_endpgm")
    a.kernels.append((name, nv, ns))

def load_ptr(a, sdst, slot):
    a("s_load_dwordx2 s[%d:%d], s[0:1], %d" % (sdst, sdst+1, slot))

def srd_from(a, sd, sptr, off, nbytes):
    if off:
        a("s_add_u32 s%d, s%d, 0x%x" % (sd, sptr, off))
        a("s_addc_u32 s%d, s%d, 0" % (sd+1, sptr+1))
    else:
        a("s_mov_b32 s%d, s%d" % (sd, sptr))
        a("s_mov_b32 s%d, s%d" % (sd+1, sptr+1))
    a("s_mov_b32 s%d, 0x%x" % (sd+2, nbytes))
    a("s_mov_b32 s%d, 0x00020000" % (sd+3))

def wave_sum(a, vsrc, vt, s0):
    a("s_nop 1")
    a("v_add_f32_dpp v%d, v%d, v%d quad_perm:[1,0,3,2] row_mask:0xf bank_mask:0xf" % (vt, vsrc, vsrc))
    a("s_nop 1")
    a("v_add_f32_dpp v%d, v%d, v%d quad_perm:[2,3,0,1] row_mask:0xf bank_mask:0xf" % (vt, vt, vt))
    a("s_nop 1")
    a("v_add_f32_dpp v%d, v%d, v%d row_half_mirror row_mask:0xf bank_mask:0xf" % (vt, vt, vt))
    a("s_nop 1")
    a("v_add_f32_dpp v%d, v%d, v%d row_mirror row_mask:0xf bank_mask:0xf" % (vt, vt, vt))
    a("s_nop 1")
    for i in range(4):
        a("v_readlane_b32 s%d, v%d, %d" % (s0+i, vt, 16*i))
    a("s_nop 1")
    a("v_mov_b32 v%d, s%d" % (vt, s0))
    for i in range(1, 4):
        a("v_add_f32 v%d, s%d, v%d" % (vt, s0+i, vt))

def rnd2(a, vpk, va, vb):
    a("v_cvt_pk_bf16_f32 v%d, v%d, v%d" % (vpk, va, vb))
    a("v_lshlrev_b32 v%d, 16, v%d" % (va, vpk))
    a("v_and_b32 v%d, 0xffff0000, v%d" % (vb, vpk))

def unpack(a, vlo, vhi, vsrc):
    a("v_lshlrev_b32 v%d, 16, v%d" % (vlo, vsrc))
    a("v_and_b32 v%d, 0xffff0000, v%d" % (vhi, vsrc))

def layernorm_regs(a, xs, n, vt, vm, vr, vpk, s0, valid=None):
    a("v_add_f32 v%d, v%d, v%d" % (vm, xs[0], xs[1]))
    for x in xs[2:]:
        a("v_add_f32 v%d, v%d, v%d" % (vm, vm, x))
    wave_sum(a, vm, vt, s0)
    a("v_mul_f32 v%d, 0x%08x, v%d" % (vm, f2u(1.0/n), vt))
    a("v_sub_f32 v%d, v%d, v%d" % (vt, xs[0], vm))
    a("v_mul_f32 v%d, v%d, v%d" % (vr, vt, vt))
    for x in xs[1:]:
        a("v_sub_f32 v%d, v%d, v%d" % (vt, x, vm))
        a("v_fmac_f32 v%d, v%d, v%d" % (vr, vt, vt))
    if valid is not None:
        a("v_mul_f32 v%d, v%d, v%d" % (vr, vr, valid))
    wave_sum(a, vr, vt, s0)
    a("v_mul_f32 v%d, 0x%08x, v%d" % (vr, f2u(1.0/n), vt))
    rnd2(a, vpk, vm, vr)
    a("v_add_f32 v%d, 0x%08x, v%d" % (vr, f2u(1e-5), vr))
    a("v_cvt_pk_bf16_f32 v%d, v%d, v%d" % (vpk, vr, vr))
    a("v_lshlrev_b32 v%d, 16, v%d" % (vr, vpk))
    a("v_sqrt_f32 v%d, v%d" % (vr, vr))
    a("s_nop 0")
    a("v_cvt_pk_bf16_f32 v%d, v%d, v%d" % (vpk, vr, vr))
    a("v_lshlrev_b32 v%d, 16, v%d" % (vr, vpk))
    a("v_rcp_f32 v%d, v%d" % (vr, vr))
    a("s_nop 0")
    for i in range(0, len(xs), 2):
        x0, x1 = xs[i], xs[i+1]
        a("v_sub_f32 v%d, v%d, v%d" % (x0, x0, vm))
        a("v_sub_f32 v%d, v%d, v%d" % (x1, x1, vm))
        rnd2(a, vpk, x0, x1)
        a("v_mul_f32 v%d, v%d, v%d" % (x0, x0, vr))
        a("v_mul_f32 v%d, v%d, v%d" % (x1, x1, vr))
        rnd2(a, vpk, x0, x1)

import struct
def f2u(f):
    return struct.unpack("<I", struct.pack("<f", f))[0]

def gen_e(a, name, src):
    srcspec, dstname = src
    begin_kernel(a, name)
    end = a.newlabel("Lend")
    a("s_cmp_ge_u32 s2, %d" % (S//4))
    a("s_cbranch_scc1 %s" % end)
    load_ptr(a, 4, D_WS)
    if srcspec[0] == 'in':
        load_ptr(a, 6, srcspec[1])
    a("s_waitcnt lgkmcnt(0)")
    if srcspec[0] == 'in':
        srd_from(a, 8, 6, 0, S*D*2)
    else:
        srd_from(a, 8, 4, WS[srcspec[1]], S*D*2)
    srd_from(a, 12, 4, WS['Y'], S*D*2)
    srd_from(a, 16, 4, WS[dstname], S*D*2)
    srd_from(a, 20, 4, WS['XN'], S*D*2)
    a("v_lshrrev_b32 v1, 6, v0")
    a("s_lshl_b32 s3, s2, 2")
    a("v_add_u32 v1, s3, v1")
    a("v_mul_u32_u24 v1, %d, v1" % (D*2))
    a("v_and_b32 v2, 63, v0")
    a("v_lshl_add_u32 v1, v2, 2, v1")
    for i in range(5):
        a("buffer_load_dword v%d, v1, s[8:11], 0 offen offset:%d" % (4+i, 256*i))
    for i in range(5):
        a("buffer_load_dword v%d, v1, s[12:15], 0 offen offset:%d" % (10+i, 256*i))
    X = list(range(20, 30)); L = list(range(30, 40)); Yv = list(range(40, 50))
    a("s_waitcnt vmcnt(5)")
    for i in range(5):
        unpack(a, X[2*i], X[2*i+1], 4+i)
        a("v_mov_b32 v%d, v%d" % (L[2*i], X[2*i]))
        a("v_mov_b32 v%d, v%d" % (L[2*i+1], X[2*i+1]))
    layernorm_regs(a, L, D, 50, 51, 52, 53, 24)
    a("s_waitcnt vmcnt(0)")
    for i in range(5):
        unpack(a, Yv[2*i], Yv[2*i+1], 10+i)
    for i in range(0, 10, 2):
        a("v_mul_f32 v%d, v%d, v%d" % (L[i], L[i], Yv[i]))
        a("v_mul_f32 v%d, v%d, v%d" % (L[i+1], L[i+1], Yv[i+1]))
        rnd2(a, 53, L[i], L[i+1])
        a("v_add_f32 v%d, v%d, v%d" % (X[i], X[i], L[i]))
        a("v_add_f32 v%d, v%d, v%d" % (X[i+1], X[i+1], L[i+1]))
        rnd2(a, 4+i//2, X[i], X[i+1])
    for i in range(5):
        a("buffer_store_dword v%d, v1, s[16:19], 0 offen offset:%d" % (4+i, 256*i))
    layernorm_regs(a, X, D, 50, 51, 52, 53, 24)
    for i in range(5):
        a("v_cvt_pk_bf16_f32 v%d, v%d, v%d" % (10+i, X[2*i], X[2*i+1]))
    for i in range(5):
        a("buffer_store_dword v%d, v1, s[20:23], 0 offen offset:%d" % (10+i, 256*i))
    a.label(end)
    end_kernel(a, name, 56, 32)

LN2_ROWS = 16
LN2_PITCH = 48
def gen_ln2(a, name):
    begin_kernel(a, name)
    end = a.newlabel("Lend")
    a("s_cmp_ge_u32 s2, %d" % (S//LN2_ROWS))
    a("s_cbranch_scc1 %s" % end)
    load_ptr(a, 4, D_WS)
    a("s_waitcnt lgkmcnt(0)")
    srd_from(a, 8, 4, WS['Z'], S*F*2)
    srd_from(a, 12, 4, WS['Z2T'], FH*S*2)
    a("v_and_b32 v2, 63, v0")
    a("v_lshrrev_b32 v3, 6, v0")
    a("v_cmp_gt_u32 vcc, 54, v2")
    a("v_mov_b32 v5, 0")
    a("v_cndmask_b32 v4, 0, 1.0, vcc")
    a("s_mov_b64 s[30:31], vcc")
    a("s_lshl_b32 s3, s2, 4")
    a("v_lshl_add_u32 v6, v3, 2, s3")
    a("v_mul_u32_u24 v7, %d, v6" % (F*2))
    a("v_lshl_add_u32 v7, v2, 4, v7")
    a("v_add_u32 v7, %d, v7" % (FH*2))
    a("v_mul_u32_u24 v8, %d, v2" % (8*LN2_PITCH))
    a("v_lshl_add_u32 v8, v3, 3, v8")
    X = list(range(24, 40))
    for r in range(4):
        for i in range(8):
            a("v_mov_b32 v%d, 0" % (12+i))
        a("s_mov_b64 exec, s[30:31]")
        a("buffer_load_dwordx4 v[12:15], v7, s[8:11], 0 offen")
        a("buffer_load_dwordx4 v[16:19], v7, s[8:11], 0 offen offset:%d" % (54*16))
        a("s_mov_b64 exec, -1")
        a("s_waitcnt vmcnt(0)")
        for i in range(8):
            unpack(a, X[2*i], X[2*i+1], 12+i)
        layernorm_regs(a, X, FH, 40, 41, 42, 43, 24, valid=4)
        a("s_mov_b64 exec, s[30:31]")
        for i in range(16):
            foff = (i % 8) + (54*8 if i >= 8 else 0)
            a("ds_write_b16_d16_hi v8, v%d offset:%d" % (X[i], foff*LN2_PITCH + 2*r))
        a("s_mov_b64 exec, -1")
        a("v_add_u32 v7, %d, v7" % (F*2))
    a("s_waitcnt lgkmcnt(0)")
    a("s_barrier")
    a("v_lshrrev_b32 v9, 1, v0")
    a("v_and_b32 v10, 1, v0")
    a("v_mul_u32_u24 v11, %d, v9" % LN2_PITCH)
    a("v_lshl_add_u32 v11, v10, 4, v11")
    a("v_lshlrev_b32 v12, 12, v9")
    a("v_lshl_add_u32 v12, v10, 4, v12")
    a("s_lshl_b32 s3, s2, 5")
    a("v_add_u32 v12, s3, v12")
    for i in range(6):
        a("ds_read_b128 v[%d:%d], v11 offset:%d" % (16+4*i, 19+4*i, 128*LN2_PITCH*i))
    for i in range(6):
        a("s_waitcnt lgkmcnt(%d)" % (5-i))
        a("buffer_store_dwordx4 v[%d:%d], v12, s[12:15], 0 offen" % (16+4*i, 19+4*i))
        a("v_add_u32 v12, 0x%x, v12" % (128*4096))
    a("v_cmp_gt_u32 vcc, %d, v0" % (1728 - 6*256))
    a("s_and_saveexec_b64 s[28:29], vcc")
    a("s_cbranch_execz %s" % end)
    a("ds_read_b128 v[40:43], v11 offset:%d" % (128*LN2_PITCH*6))
    a("s_waitcnt lgkmcnt(0)")
    a("buffer_store_dwordx4 v[40:43], v12, s[12:15], 0 offen")
    a.label(end)
    end_kernel(a, name, 48, 32)

NS = 4
def gen_gemm(a, name, Pd, Qd, K, TP, TQ, nP, nQ, epi, epi_args):
    begin_kernel(a, name)
    end = a.newlabel("Lend")
    nWG = nP*nQ
    a("s_cmp_ge_u32 s2, %d" % nWG)
    a("s_cbranch_scc1 %s" % end)
    load_ptr(a, 4, D_WS)
    sl = 6
    ptrs = {}
    for d in (Pd, Qd):
        if d[0] == 'in':
            load_ptr(a, sl, d[1]); ptrs[d[1]] = sl; sl += 2
    for slot in epi_args.get('in_slots', []):
        load_ptr(a, sl, slot); ptrs[slot] = sl; sl += 2
    assert sl <= 16
    a("s_mov_b32 s40, 0x%x" % ((1 << 32)//nP + 1))
    a("s_mul_hi_u32 s41, s2, s40")
    a("s_mul_i32 s40, s41, %d" % nP)
    a("s_sub_u32 s40, s2, s40")
    a("s_mul_i32 s42, s40, %d" % TP)
    a("s_mul_i32 s43, s41, %d" % TQ)
    a("v_lshrrev_b32 v1, 6, v0")
    a("s_nop 0")
    a("v_readfirstlane_b32 s44, v1")
    a("v_and_b32 v2, 63, v0")
    a("s_waitcnt lgkmcnt(0)")
    def mk(sd, d):
        if d[0] == 'in': srd_from(a, sd, ptrs[d[1]], 0, d[3])
        else: srd_from(a, sd, 4, WS[d[1]], d[3])
    mk(16, Pd); mk(20, Qd)
    SB = (TP+TQ)*128
    nI = (TP+TQ)//32
    nIP = TP//32
    assert TP % 32 == 0 and TQ % 32 == 0
    VD = 8
    a("v_lshrrev_b32 v3, 3, v2")
    a("v_and_b32 v4, 7, v2")
    a("v_lshrrev_b32 v5, 4, v2")
    a("s_lshl_b32 s45, s44, 3")
    a("s_lshl_b32 s46, s44, 2")
    for j in range(nI):
        isP = j < nIP
        jj = j if isP else j - nIP
        pitch = Pd[2] if isP else Qd[2]
        t0 = 42 if isP else 43
        a("v_add_u32 v6, s46, v5")
        a("v_and_b32 v6, 7, v6")
        a("v_xor_b32 v6, v6, v4")
        a("v_add_u32 v7, s45, v3")
        a("v_add_u32 v7, s%d, v7" % t0)
        if jj: a("v_add_u32 v7, %d, v7" % (32*jj))
        a("s_mov_b32 s47, %d" % pitch)
        a("v_mul_lo_u32 v7, v7, s47")
        a("v_lshl_add_u32 v%d, v6, 4, v7" % (VD+j))
    WPn, WQn = 2, 2
    wp, wq = TP//WPn, TQ//WQn
    nPf, nQf = wp//16, wq//16
    VA = VD + nI
    def vaddr(isQ, kk, half): return VA + (4 if isQ else 0) + 2*kk + half
    a("v_and_b32 v3, 15, v2")
    a("v_lshrrev_b32 v4, 1, v3")
    a("v_and_b32 v4, 7, v4")
    a("v_xor_b32 v4, v4, v5")
    a("v_lshlrev_b32 v4, 4, v4")
    a("v_lshl_add_u32 v4, v3, 7, v4")
    a("s_and_b32 s45, s44, 1")
    a("s_lshr_b32 s46, s44, 1")
    a("s_mul_i32 s47, s45, %d" % (wp*128))
    a("s_mul_i32 s48, s46, %d" % (wq*128))
    a("s_add_u32 s48, s48, %d" % (TP*128))
    for isQ in (0, 1):
        for kk in range(2):
            for half in range(2):
                v = vaddr(isQ, kk, half)
                a("v_add_u32 v%d, s%d, v4" % (v, 48 if isQ else 47))
                if kk: a("v_xor_b32 v%d, 64, v%d" % (v, v))
                if half: a("v_add_u32 v%d, %d, v%d" % (v, 2*SB, v))
    VF = (VA + 8 + 3)//4*4
    def vPf(kk, i): return VF + (kk*nPf + i)*4
    def vQf(kk, j): return VF + (2*nPf + kk*nQf + j)*4
    VACC = VF + 2*(nPf+nQf)*4
    def acc(i, j): return VACC + (i*nQf + j)*4
    VEND = VACC + nPf*nQf*4
    for r in range(VACC, VEND):
        a("v_mov_b32 v%d, 0" % r)
    a("s_lshl_b32 s49, s44, 10")
    nsteps = (K + 63)//64
    lastpartial = (K % 64) != 0
    def dma(step, j):
        st = step % NS
        isP = j < nIP
        a("s_add_u32 m0, s49, %d" % (st*SB + j*4096))
        a("s_nop 0")
        a("buffer_load_dwordx4 v%d, s[%d:%d], s50 offen lds" % (VD+j, 16 if isP else 20, 19 if isP else 23))
    for st in range(NS-1):
        a("s_mov_b32 s50, %d" % (st*128))
        for j in range(nI): dma(st, j)
    for k in range(nsteps):
        st = k % NS
        inflight = min(k+NS-2, nsteps-1) - k
        a("s_waitcnt vmcnt(%d)" % (nI*inflight))
        a("s_barrier")
        nk = 1 if (lastpartial and k == nsteps-1) else 2
        half = st//2; soff = (st % 2)*SB
        reads = []
        for kk in range(nk):
            order = [('P', 0)] + [('Q', j) for j in range(nQf)] + [('P', i) for i in range(1, nPf)]
            for (t, i) in order:
                if t == 'P':
                    a("ds_read_b128 v[%d:%d], v%d offset:%d" % (vPf(kk,i), vPf(kk,i)+3, vaddr(0,kk,half), soff + i*2048))
                else:
                    a("ds_read_b128 v[%d:%d], v%d offset:%d" % (vQf(kk,i), vQf(kk,i)+3, vaddr(1,kk,half), soff + i*2048))
                reads.append((kk, t, i))
        nd = k+NS-1
        dmas = list(range(nI)) if nd < nsteps else []
        if dmas: a("s_mov_b32 s50, %d" % (nd*128))
        cur = 99
        cnt = 0
        for kk in range(nk):
            for i in range(nPf):
                for j in range(nQf):
                    need = max(reads.index((kk,'P',i)), reads.index((kk,'Q',j)))
                    w = len(reads) - 1 - need
                    if w < cur:
                        a("s_waitcnt lgkmcnt(%d)" % w); cur = w
                    a("v_mfma_f32_16x16x32_bf16 v[%d:%d], v[%d:%d], v[%d:%d], v[%d:%d]" % (
                        acc(i,j), acc(i,j)+3, vPf(kk,i), vPf(kk,i)+3, vQf(kk,j), vQf(kk,j)+3, acc(i,j), acc(i,j)+3))
                    cnt += 1
                    if dmas and cnt % 3 == 0:
                        dma(nd, dmas.pop(0))
        while dmas: dma(nd, dmas.pop(0))
    a("s_nop 15")
    ctx = dict(a=a, acc=acc, nPf=nPf, nQf=nQf, wp=wp, wq=wq, VF=VF, VACC=VACC, ptrs=ptrs)
    a("v_and_b32 v3, 15, v2")
    a("s_mul_i32 s47, s46, %d" % wq)
    a("s_add_u32 s47, s47, s43")
    a("v_add_u32 v3, s47, v3")
    a("v_lshrrev_b32 v4, 4, v2")
    a("v_lshlrev_b32 v4, 2, v4")
    a("s_mul_i32 s47, s45, %d" % wp)
    a("s_add_u32 s47, s47, s42")
    a("v_add_u32 v4, s47, v4")
    epi(ctx, epi_args)
    a.label(end)
    end_kernel(a, name, VEND, 64)
    return NS*SB

def epi_g1(c, args):
    a = c['a']
    srd_from(a, 24, 4, WS['Z'], S*F*2)
    a("v_mul_u32_u24 v5, %d, v3" % (F*2))
    a("v_lshl_add_u32 v5, v4, 1, v5")
    a("v_mov_b32 v6, 0x%08x" % f2u(-2.302208198))
    a("s_mov_b32 s52, 0x%08x" % f2u(-2.302208198*0.044715))
    T = c['VF']
    for j in range(c['nQf']):
        for i in range(c['nPf']):
            r = c['acc'](i, j)
            rnd2(a, T, r, r+1); rnd2(a, T, r+2, r+3)
            for e in range(4):
                x = r+e; t = T+1+e
                a("v_mul_f32 v%d, v%d, v%d" % (t, x, x))
                a("v_fma_f32 v%d, v%d, s52, v6" % (t, t))
                a("v_mul_f32 v%d, v%d, v%d" % (t, t, x))
                a("v_exp_f32 v%d, v%d" % (t, t))
            a("s_nop 0")
            for e in range(4):
                t = T+1+e
                a("v_add_f32 v%d, 1.0, v%d" % (t, t))
                a("v_rcp_f32 v%d, v%d" % (t, t))
            a("s_nop 0")
            for e in range(4):
                a("v_mul_f32 v%d, v%d, v%d" % (r+e, r+e, T+1+e))
            a("v_cvt_pk_bf16_f32 v%d, v%d, v%d" % (r, r, r+1))
            a("v_cvt_pk_bf16_f32 v%d, v%d, v%d" % (r+1, r+2, r+3))
            a("buffer_store_dwordx2 v[%d:%d], v5, s[24:27], 0 offen offset:%d" % (r, r+1, i*32))
        a("v_add_u32 v5, %d, v5" % (16*F*2))

def epi_g2(c, args):
    a = c['a']
    srd_from(a, 24, 4, WS['Z'], S*F*2)
    srd_from(a, 28, 4, WS['H'], S*FH*2)
    srd_from(a, 32, c['ptrs'][B_BSP], 0, S*2)
    a("v_mul_u32_u24 v5, %d, v3" % (F*2))
    a("v_lshl_add_u32 v5, v4, 1, v5")
    a("v_mul_u32_u24 v6, %d, v3" % (FH*2))
    a("v_lshl_add_u32 v6, v4, 1, v6")
    a("v_lshlrev_b32 v7, 1, v3")
    T = c['VF']
    nPf, nQf = c['nPf'], c['nQf']
    for j in range(nQf):
        a("buffer_load_ushort v%d, v7, s[32:35], 0 offen offset:%d" % (T+j, 32*j))
    for j in range(nQf):
        for i in range(nPf):
            z = T+8+(j*nPf+i)*2
            a("buffer_load_dwordx2 v[%d:%d], v5, s[24:27], 0 offen offset:%d" % (z, z+1, i*32))
        a("v_add_u32 v5, %d, v5" % (16*F*2))
    a("s_waitcnt vmcnt(0)")
    U = T+8+nPf*nQf*2
    for j in range(nQf):
        a("v_lshlrev_b32 v%d, 16, v%d" % (T+j, T+j))
        for i in range(nPf):
            r = c['acc'](i, j); z = T+8+(j*nPf+i)*2
            rnd2(a, U, r, r+1); rnd2(a, U, r+2, r+3)
            for e in range(4):
                a("v_add_f32 v%d, v%d, v%d" % (r+e, r+e, T+j))
            rnd2(a, U, r, r+1); rnd2(a, U, r+2, r+3)
            unpack(a, U, U+1, z); unpack(a, U+2, U+3, z+1)
            for e in range(4):
                a("v_mul_f32 v%d, v%d, v%d" % (r+e, r+e, U+e))
            a("v_cvt_pk_bf16_f32 v%d, v%d, v%d" % (r, r, r+1))
            a("v_cvt_pk_bf16_f32 v%d, v%d, v%d" % (r+1, r+2, r+3))
            a("buffer_store_dwordx2 v[%d:%d], v6, s[28:31], 0 offen offset:%d" % (r, r+1, i*32))
        a("v_add_u32 v6, %d, v6" % (16*FH*2))

def epi_g3(c, args):
    a = c['a']
    srd_from(a, 24, 4, WS[args['xin']], S*D*2)
    if args['out'] == 'dout':
        srd_from(a, 28, c['ptrs'][D_OUT], 0, S*D*2)
    else:
        srd_from(a, 28, 4, WS[args['out']], S*D*2)
    a("v_mul_u32_u24 v5, %d, v3" % (D*2))
    a("v_lshl_add_u32 v5, v4, 1, v5")
    a("v_mov_b32 v6, v5")
    T = c['VF']
    nPf, nQf = c['nPf'], c['nQf']
    for j in range(nQf):
        for i in range(nPf):
            z = T+(j*nPf+i)*2
            a("buffer_load_dwordx2 v[%d:%d], v5, s[24:27], 0 offen offset:%d" % (z, z+1, i*32))
        a("v_add_u32 v5, %d, v5" % (16*D*2))
    a("s_waitcnt vmcnt(0)")
    U = T+nPf*nQf*2
    for j in range(nQf):
        for i in range(nPf):
            r = c['acc'](i, j); z = T+(j*nPf+i)*2
            rnd2(a, U, r, r+1); rnd2(a, U, r+2, r+3)
            unpack(a, U, U+1, z); unpack(a, U+2, U+3, z+1)
            for e in range(4):
                a("v_add_f32 v%d, v%d, v%d" % (r+e, r+e, U+e))
            a("v_cvt_pk_bf16_f32 v%d, v%d, v%d" % (r, r, r+1))
            a("v_cvt_pk_bf16_f32 v%d, v%d, v%d" % (r+1, r+2, r+3))
            a("buffer_store_dwordx2 v[%d:%d], v6, s[28:31], 0 offen offset:%d" % (r, r+1, i*32))
        a("v_add_u32 v6, %d, v6" % (16*D*2))

NCONV = D//2
NT_IN = (D//32)*(F//64)
NT_OUT = (FH//32)*(D//64)
COPYSZ = 4160
KVSZ = 96*80
CHSZ = 8*COPYSZ + KVSZ
def gen_prep(a, name):
    begin_kernel(a, name)
    end = a.newlabel("Lend"); ltr = a.newlabel("Ltr"); ltr2 = a.newlabel("Ltr2"); ltrgo = a.newlabel("Ltrgo")
    a("s_cmp_ge_u32 s2, %d" % (NCONV+NT_IN+NT_OUT))
    a("s_cbranch_scc1 %s" % end)
    load_ptr(a, 4, D_WS)
    a("s_cmp_ge_u32 s2, %d" % NCONV)
    a("s_cbranch_scc1 %s" % ltr)
    load_ptr(a, 6, A_K); load_ptr(a, 8, A_V); load_ptr(a, 10, A_SHK); load_ptr(a, 12, A_SSMK); load_ptr(a, 14, A_SSMD)
    a("s_waitcnt lgkmcnt(0)")
    a("s_lshl_b32 s3, s2, 4")
    a("s_add_u32 s10, s10, s3"); a("s_addc_u32 s11, s11, 0")
    a("s_lshl_b32 s3, s2, 2")
    a("s_add_u32 s14, s14, s3"); a("s_addc_u32 s15, s15, 0")
    a("s_load_dwordx4 s[40:43], s[10:11], 0")
    a("s_load_dword s44, s[14:15], 0")
    srd_from(a, 16, 6, 0, S*D*2)
    srd_from(a, 20, 8, 0, S*D*2)
    srd_from(a, 24, 12, 0, D*S*2)
    srd_from(a, 28, 4, WS['Y'], S*D*2)
    a("v_mul_u32_u24 v1, %d, v0" % (8*D*2))
    a("v_add_u32 v1, s3, v1")
    a("v_subrev_u32 v2, %d, v1" % (3*D*2))
    for i in range(11):
        if i*1280 <= 4095:
            a("buffer_load_dword v%d, v2, s[16:19], 0 offen offset:%d" % (10+i, i*1280))
        else:
            if (i % 3) == 1 or i == 4:
                pass
            a("v_add_u32 v3, %d, v2" % (i*1280))
            a("buffer_load_dword v%d, v3, s[16:19], 0 offen" % (10+i))
    for i in range(8):
        if i*1280 <= 4095:
            a("buffer_load_dword v%d, v1, s[20:23], 0 offen offset:%d" % (22+i, i*1280))
        else:
            a("v_add_u32 v3, %d, v1" % (i*1280))
            a("buffer_load_dword v%d, v3, s[20:23], 0 offen" % (22+i))
    a("s_waitcnt lgkmcnt(0)")
    for ch in range(2):
        for t in range(4):
            src = 40 + 2*ch + t//2
            if t % 2 == 0: a("s_lshl_b32 s%d, s%d, 16" % (48+4*ch+t, src))
            else: a("s_and_b32 s%d, s%d, 0xffff0000" % (48+4*ch+t, src))
    a("s_lshl_b32 s56, s44, 16"); a("s_and_b32 s57, s44, 0xffff0000")
    a("s_waitcnt vmcnt(0)")
    for i in range(11):
        unpack(a, 32+i, 44+i, 10+i)
    for r in range(8):
        for t in range(4):
            a("v_mul_f32 v4, s%d, v%d" % (48+3-t, 32+r+t))
            a("v_mul_f32 v5, s%d, v%d" % (52+3-t, 44+r+t))
            rnd2(a, 6, 4, 5)
            if t == 0:
                a("v_mov_b32 v%d, v4" % (60+r)); a("v_mov_b32 v%d, v5" % (68+r))
            else:
                a("v_add_f32 v%d, v%d, v4" % (60+r, 60+r)); a("v_add_f32 v%d, v%d, v5" % (68+r, 68+r))
                rnd2(a, 6, 60+r, 68+r)
        unpack(a, 4, 5, 22+r)
        a("v_mul_f32 v%d, v%d, v4" % (60+r, 60+r)); a("v_mul_f32 v%d, v%d, v5" % (68+r, 68+r))
    for ch in range(2):
        b = 60+8*ch
        for m in range(4):
            a("v_cvt_pk_bf16_f32 v%d, v%d, v%d" % (76+4*ch+m, b+7-2*m, b+6-2*m))
    a("v_lshlrev_b32 v4, 3, v0")
    a("v_sub_u32 v4, 2040, v4")
    a("v_lshrrev_b32 v5, 5, v4")
    a("v_and_b32 v4, 31, v4")
    a("v_mul_u32_u24 v5, 80, v5")
    a("v_lshl_add_u32 v4, v4, 1, v5")
    a("v_add_u32 v5, %d, v4" % CHSZ)
    a("ds_write_b128 v4, v[76:79] offset:%d" % (8*COPYSZ))
    a("ds_write_b128 v5, v[80:83] offset:%d" % (8*COPYSZ))
    a("v_mov_b32 v84, 0"); a("v_mov_b32 v85, 0"); a("v_mov_b32 v86, 0"); a("v_mov_b32 v87, 0")
    a("v_lshlrev_b32 v4, 4, v0")
    a("v_add_u32 v5, %d, v4" % CHSZ)
    a("v_cmp_gt_u32 vcc, 160, v0")
    a("s_and_saveexec_b64 s[58:59], vcc")
    a("ds_write_b128 v4, v[84:87] offset:%d" % (8*COPYSZ + 64*80))
    a("ds_write_b128 v5, v[84:87] offset:%d" % (8*COPYSZ + 64*80))
    a("s_mov_b64 exec, -1")
    a("v_lshrrev_b32 v5, 7, v0")
    a("v_and_b32 v6, 127, v0")
    a("s_lshl_b32 s3, s2, 13")
    a("v_lshlrev_b32 v7, 12, v5")
    a("v_add_u32 v7, s3, v7")
    a("v_mul_u32_u24 v8, %d, v5" % CHSZ)
    for i in range(3):
        skip = a.newlabel("Lsk")
        if i == 2:
            a("v_cmp_gt_u32 vcc, 260, v6")
            a("s_and_saveexec_b64 s[58:59], vcc")
            a("s_cbranch_execz %s" % skip)
        for r in range(8): a("v_mov_b32 v%d, 0" % (12+r))
        a("v_subrev_u32 v9, 4, v6")
        a("v_lshl_add_u32 v10, v9, 4, v7")
        a("v_cmp_gt_u32 vcc, 256, v9")
        a("s_and_saveexec_b64 s[60:61], vcc")
        a("buffer_load_dwordx4 v[12:15], v10, s[24:27], 0 offen")
        a("s_mov_b64 exec, s[60:61]")
        a("v_add_u32 v9, 1, v9")
        a("v_cmp_gt_u32 vcc, 256, v9")
        a("s_and_saveexec_b64 s[60:61], vcc")
        a("buffer_load_dwordx4 v[16:19], v10, s[24:27], 0 offen offset:16")
        a("s_mov_b64 exec, s[60:61]")
        a("v_lshl_add_u32 v11, v6, 4, v8")
        a("s_waitcnt vmcnt(0)")
        for r in range(8):
            sh = 1 + r
            for m in range(4):
                if sh % 2 == 0:
                    a("v_mov_b32 v%d, v%d" % (20+m, 12 + sh//2 + m))
                else:
                    lo = 12 + (sh-1)//2 + m
                    a("v_alignbit_b32 v%d, v%d, v%d, 16" % (20+m, lo+1, lo))
            a("ds_write_b128 v11, v[20:23] offset:%d" % (r*COPYSZ))
            a("s_nop 1")
        if i == 2:
            a.label(skip)
            a("s_mov_b64 exec, -1")
        else:
            a("v_add_u32 v6, 128, v6")
    a("s_waitcnt lgkmcnt(0)")
    a("s_barrier")
    a("v_lshrrev_b32 v1, 6, v0")
    a("s_nop 0")
    a("v_readfirstlane_b32 s45, v1")
    a("v_and_b32 v2, 63, v0")
    a("s_lshr_b32 s46, s45, 1")
    a("s_and_b32 s47, s45, 1")
    a("s_mul_i32 s48, s46, %d" % CHSZ)
    a("v_and_b32 v3, 31, v2")
    a("v_lshrrev_b32 v4, 5, v2")
    a("v_and_b32 v5, 7, v3")
    a("v_mul_u32_u24 v5, %d, v5" % COPYSZ)
    a("v_and_b32 v6, 24, v3")
    a("v_lshl_add_u32 v6, v4, 3, v6")
    a("v_lshl_add_u32 v5, v6, 1, v5")
    a("v_add_u32 v5, s48, v5")
    a("s_lshl_b32 s49, s47, 5")
    a("v_add_u32 v7, s49, v3")
    a("v_sub_u32 v8, 63, v7")
    a("v_mul_u32_u24 v8, 80, v8")
    a("v_lshl_add_u32 v8, v4, 4, v8")
    a("v_add_u32 v8, s48, v8")
    a("v_add_u32 v8, %d, v8" % (8*COPYSZ))
    for r in range(16): a("v_mov_b32 v%d, 0" % (32+r))
    a("s_lshl_b32 s50, s47, 3")
    a("s_add_u32 s50, s50, 8")
    loop = a.newlabel("Lconv")
    a.label(loop)
    UN = 4
    for c in range(UN):
        for kb in range(2):
            a("ds_read_b128 v[%d:%d], v5 offset:%d" % (48+(c*2+kb)*4, 51+(c*2+kb)*4, c*64 + kb*32))
            a("ds_read_b128 v[%d:%d], v8 offset:%d" % (80+(c*2+kb)*4, 83+(c*2+kb)*4, c*80 + kb*32))
    for c in range(UN):
        for kb in range(2):
            idx = c*2+kb
            a("s_waitcnt lgkmcnt(%d)" % (2*(2*UN-1-idx)))
            a("v_mfma_f32_32x32x16_bf16 v[32:47], v[%d:%d], v[%d:%d], v[32:47]" % (48+idx*4, 51+idx*4, 80+idx*4, 83+idx*4))
    a("v_add_u32 v5, %d, v5" % (UN*64))
    a("v_add_u32 v8, %d, v8" % (UN*80))
    a("s_sub_u32 s50, s50, 1")
    a("s_cmp_lg_u32 s50, 0")
    a("s_cbranch_scc1 %s" % loop)
    a("s_nop 15")
    a("v_sub_u32 v9, 63, v7")
    a("v_mul_u32_u24 v9, 80, v9")
    a("v_add_u32 v9, s48, v9")
    a("v_lshlrev_b32 v10, 3, v4")
    a("v_sub_u32 v9, v9, v10")
    a("v_add_u32 v9, %d, v9" % (8*COPYSZ + 2*28))
    for rq in range(4):
        a("ds_read_b64 v[%d:%d], v9 offset:%d" % (48+2*rq, 49+2*rq, 0) if rq == 0 else "v_subrev_u32 v9, 16, v9")
        if rq:
            a("ds_read_b64 v[%d:%d], v9" % (48+2*rq, 49+2*rq))
    a("s_cmp_eq_u32 s46, 0")
    a("s_cselect_b32 s51, s56, s57")
    a("v_lshlrev_b32 v11, 5, v7")
    a("v_lshl_add_u32 v11, v4, 2, v11")
    a("v_mul_u32_u24 v11, %d, v11" % (D*2))
    a("s_lshl_b32 s3, s2, 2")
    a("s_lshl_b32 s52, s46, 1")
    a("s_add_u32 s3, s3, s52")
    a("v_add_u32 v11, s3, v11")
    a("s_waitcnt lgkmcnt(0)")
    for rq in range(4):
        r = 32+4*rq
        unpack(a, 59, 58, 48+2*rq)
        unpack(a, 57, 56, 49+2*rq)
        for e in range(4):
            a("v_mul_f32 v%d, s51, v%d" % (56+e, 56+e))
        rnd2(a, 60, 56, 57); rnd2(a, 60, 58, 59)
        rnd2(a, 60, r, r+1); rnd2(a, 60, r+2, r+3)
        for e in range(4):
            a("v_add_f32 v%d, v%d, v%d" % (r+e, r+e, 56+e))
        a("v_cvt_pk_bf16_f32 v%d, v%d, v%d" % (r, r, r+1))
        a("v_cvt_pk_bf16_f32 v%d, v%d, v%d" % (r+1, r+2, r+3))
        a("buffer_store_short v%d, v11, s[28:31], 0 offen" % r)
        a("buffer_store_short_d16_hi v%d, v11, s[28:31], 0 offen offset:%d" % (r, 1280))
        a("buffer_store_short v%d, v11, s[28:31], 0 offen offset:%d" % (r+1, 2560))
        a("buffer_store_short_d16_hi v%d, v11, s[28:31], 0 offen offset:%d" % (r+1, 3840))
        a("v_add_u32 v11, %d, v11" % (8*1280))
    a("s_branch %s" % end)
    a.label(ltr)
    a("s_cmp_ge_u32 s2, %d" % (NCONV+NT_IN))
    a("s_cbranch_scc1 %s" % ltr2)
    load_ptr(a, 6, B_WIN)
    a("s_waitcnt lgkmcnt(0)")
    srd_from(a, 16, 6, 0, D*F*2)
    srd_from(a, 20, 4, WS['WINT'], D*F*2)
    a("s_sub_u32 s3, s2, %d" % NCONV)
    a("s_mov_b32 s40, 0x%x" % ((1 << 32)//27 + 1))
    a("s_mul_hi_u32 s41, s3, s40")
    a("s_mul_i32 s40, s41, 27")
    a("s_sub_u32 s40, s3, s40")
    a("s_mov_b32 s42, %d" % (F*2))
    a("s_mov_b32 s43, %d" % (D*2))
    a("s_branch %s" % ltrgo)
    a.label(ltr2)
    load_ptr(a, 6, B_WOUT)
    a("s_waitcnt lgkmcnt(0)")
    srd_from(a, 16, 6, 0, D*FH*2)
    srd_from(a, 20, 4, WS['WOUTT'], D*FH*2)
    a("s_sub_u32 s3, s2, %d" % (NCONV+NT_IN))
    a("s_mov_b32 s40, 0x%x" % ((1 << 32)//10 + 1))
    a("s_mul_hi_u32 s41, s3, s40")
    a("s_mul_i32 s40, s41, 10")
    a("s_sub_u32 s40, s3, s40")
    a("s_mov_b32 s42, %d" % (D*2))
    a("s_mov_b32 s43, %d" % (FH*2))
    a.label(ltrgo)
    a("s_lshl_b32 s41, s41, 5")
    a("s_lshl_b32 s40, s40, 6")
    a("v_lshrrev_b32 v1, 3, v0")
    a("v_and_b32 v2, 7, v0")
    a("v_add_u32 v3, s41, v1")
    a("v_mul_lo_u32 v3, v3, s42")
    a("v_lshl_add_u32 v3, v2, 4, v3")
    a("s_lshl_b32 s44, s40, 1")
    a("v_add_u32 v3, s44, v3")
    a("buffer_load_dwordx4 v[8:11], v3, s[16:19], 0 offen")
    a("v_mul_u32_u24 v4, 640, v2")
    a("v_lshl_add_u32 v4, v1, 1, v4")
    a("s_waitcnt vmcnt(0)")
    for e in range(8):
        if e % 2 == 0: a("ds_write_b16 v4, v%d offset:%d" % (8+e//2, e*80))
        else: a("ds_write_b16_d16_hi v4, v%d offset:%d" % (8+e//2, e*80))
    a("s_waitcnt lgkmcnt(0)")
    a("s_barrier")
    a("v_lshrrev_b32 v1, 2, v0")
    a("v_and_b32 v2, 3, v0")
    a("v_mul_u32_u24 v4, 80, v1")
    a("v_lshl_add_u32 v4, v2, 4, v4")
    a("ds_read_b128 v[8:11], v4")
    a("v_add_u32 v3, s40, v1")
    a("v_mul_lo_u32 v3, v3, s43")
    a("v_lshl_add_u32 v3, v2, 4, v3")
    a("s_lshl_b32 s44, s41, 1")
    a("v_add_u32 v3, s44, v3")
    a("s_waitcnt lgkmcnt(0)")
    a("buffer_store_dwordx4 v[8:11], v3, s[20:23], 0 offen")
    a.label(end)
    end_kernel(a, name, 112, 64)

def main():
    a = Asm()
    launches = []
    gen_prep(a, "prep_kernel"); launches.append(("prep_kernel", NCONV+NT_IN+NT_OUT, 256, 2*CHSZ))
    gen_e(a, "e1_kernel", (('in', A_Q), 'X1'))
    gen_e(a, "e2_kernel", (('ws', 'X2'), 'X3'))
    l1 = gen_gemm(a, "g1_kernel", ('ws', 'WINT', D*2, F*D*2), ('ws', 'XN', D*2, S*D*2), D, 96, 128, F//96, S//128, epi_g1, {})
    gen_ln2(a, "ln2_kernel")
    l2 = gen_gemm(a, "g2_kernel", ('ws', 'Z2T', S*2, FH*S*2), ('in', B_WSP, S*2, S*S*2), S, 96, 128, FH//96, S//128, epi_g2, {'in_slots': [B_BSP]})
    l3 = gen_gemm(a, "g3a_kernel", ('ws', 'WOUTT', FH*2, D*FH*2+4096), ('ws', 'H', FH*2, S*FH*2+4096), FH, 64, 128, D//64, S//128, epi_g3, {'xin': 'X1', 'out': 'X2'})
    gen_gemm(a, "g3b_kernel", ('ws', 'WOUTT', FH*2, D*FH*2+4096), ('ws', 'H', FH*2, S*FH*2+4096), FH, 64, 128, D//64, S//128, epi_g3, {'xin': 'X3', 'out': 'dout', 'in_slots': [D_OUT]})
    for lay in range(2):
        launches.append(("e%d_kernel" % (lay+1), S//4, 256, 0))
        launches.append(("g1_kernel", (F//96)*(S//128), 256, l1))
        launches.append(("ln2_kernel", S//LN2_ROWS, 256, FH*LN2_PITCH))
        launches.append(("g2_kernel", (FH//96)*(S//128), 256, l2))
        launches.append(("g3a_kernel" if lay == 0 else "g3b_kernel", (D//64)*(S//128), 256, l3))
    nl = int(sys.argv[2]) if len(sys.argv) > 2 else len(launches)
    out = []
    for (k, g, b, l) in launches[:nl]:
        out.append("; @launch kernel=%s grid=(%d,1,1) block=(%d,1,1) lds=%d" % (k, g, b, l))
    out.append('.amdgcn_target "amdgcn-amd-amdhsa--gfx950"')
    out.append(".text")
    out += a.lines
    out.append('.section .rodata,"a"')
    for (k, nv, ns) in a.kernels:
        nv8 = (nv + 7)//8*8
        out.append(".p2align 6")
        out.append(".amdhsa_kernel %s" % k)
        out.append("  .amdhsa_next_free_vgpr %d" % nv8)
        out.append("  .amdhsa_next_free_sgpr %d" % ns)
        out.append("  .amdhsa_accum_offset %d" % nv8)
        out.append("  .amdhsa_group_segment_fixed_size 0")
        out.append("  .amdhsa_kernarg_size 112")
        out.append("  .amdhsa_user_sgpr_count 2")
        out.append("  .amdhsa_user_sgpr_kernarg_segment_ptr 1")
        out.append("  .amdhsa_system_sgpr_workgroup_id_x 1")
        out.append(".end_amdhsa_kernel")
    open(sys.argv[1], "w").write("\n".join(out) + "\n")
    import json
    json.dump(WS, open(sys.argv[1] + ".ws.json", "w"))

if __name__ == "__main__":
    main()
```

```python
import math, sys, os
EXP = os.environ.get('EXP', '')

S = 2048; D = 640; F = 1728; FH = 864
NAME = "interleave_layers__ssm_conv_h3__mixer_gmlp__prompt"

A_Q, A_K, A_V, A_SHK, A_SSMK, A_SSMD, B_X, B_WIN, B_WSP, B_BSP, B_WOUT, D_OUT, D_DBG, D_WS = [8*i for i in range(14)]

def al(x, a=4096): return (x + a - 1)//a*a
WS = {}
_off = 0
def ws_alloc(name, nbytes):
    global _off
    WS[name] = _off
    _off = al(_off + nbytes + 4096)
ws_alloc('Y', S*D*2)
ws_alloc('WINT', F*D*2)
ws_alloc('WOUTT', D*FH*2)
ws_alloc('X1', S*D*2)
ws_alloc('XN', S*D*2)
ws_alloc('Z', S*F*2)
ws_alloc('Z2T', FH*S*2)
ws_alloc('H', S*FH*2)
ws_alloc('X2', S*D*2)
ws_alloc('X3', S*D*2)
ws_alloc('KVR', D*64*80)
WS_TOTAL = _off

class Asm:
    def __init__(self):
        self.lines = []
        self.kernels = []
        self.lab = 0
    def __call__(self, s):
        self.lines.append("    " + s)
    def label(self, l):
        self.lines.append(l + ":")
    def newlabel(self, p="L"):
        self.lab += 1
        return "%s_%d" % (p, self.lab)
    def raw(self, s):
        self.lines.append(s)

def begin_kernel(a, name):
    a.raw(".p2align 8")
    a.raw(".type %s,@function" % name)
    a.raw("%s:" % name)

def end_kernel(a, name, nv, ns=102):
    a("s_endpgm")
    a.kernels.append((name, nv, ns))

def load_ptr(a, sdst, slot):
    a("s_load_dwordx2 s[%d:%d], s[0:1], %d" % (sdst, sdst+1, slot))

def srd_from(a, sd, sptr, off, nbytes):
    if off:
        a("s_add_u32 s%d, s%d, 0x%x" % (sd, sptr, off))
        a("s_addc_u32 s%d, s%d, 0" % (sd+1, sptr+1))
    else:
        a("s_mov_b32 s%d, s%d" % (sd, sptr))
        a("s_mov_b32 s%d, s%d" % (sd+1, sptr+1))
    a("s_mov_b32 s%d, 0x%x" % (sd+2, nbytes))
    a("s_mov_b32 s%d, 0x00020000" % (sd+3))

def wave_sum(a, vsrc, vt, s0):
    a("s_nop 1")
    a("v_add_f32_dpp v%d, v%d, v%d quad_perm:[1,0,3,2] row_mask:0xf bank_mask:0xf" % (vt, vsrc, vsrc))
    a("s_nop 1")
    a("v_add_f32_dpp v%d, v%d, v%d quad_perm:[2,3,0,1] row_mask:0xf bank_mask:0xf" % (vt, vt, vt))
    a("s_nop 1")
    a("v_add_f32_dpp v%d, v%d, v%d row_half_mirror row_mask:0xf bank_mask:0xf" % (vt, vt, vt))
    a("s_nop 1")
    a("v_add_f32_dpp v%d, v%d, v%d row_mirror row_mask:0xf bank_mask:0xf" % (vt, vt, vt))
    a("s_nop 1")
    for i in range(4):
        a("v_readlane_b32 s%d, v%d, %d" % (s0+i, vt, 16*i))
    a("s_nop 1")
    a("v_mov_b32 v%d, s%d" % (vt, s0))
    for i in range(1, 4):
        a("v_add_f32 v%d, s%d, v%d" % (vt, s0+i, vt))

def rnd2(a, vpk, va, vb):
    a("v_cvt_pk_bf16_f32 v%d, v%d, v%d" % (vpk, va, vb))
    a("v_lshlrev_b32 v%d, 16, v%d" % (va, vpk))
    a("v_and_b32 v%d, 0xffff0000, v%d" % (vb, vpk))

def unpack(a, vlo, vhi, vsrc):
    a("v_lshlrev_b32 v%d, 16, v%d" % (vlo, vsrc))
    a("v_and_b32 v%d, 0xffff0000, v%d" % (vhi, vsrc))

def layernorm_regs(a, xs, n, vt, vm, vr, vpk, s0, valid=None, nvalid_tail=None):
    ln_stats(a, xs, n, vt, vm, vr, vpk, s0, valid, nvalid_tail)
    for i in range(0, len(xs), 2):
        x0, x1 = xs[i], xs[i+1]
        a("v_sub_f32 v%d, v%d, v%d" % (x0, x0, vm))
        a("v_sub_f32 v%d, v%d, v%d" % (x1, x1, vm))
        rnd2(a, vpk, x0, x1)
        a("v_mul_f32 v%d, v%d, v%d" % (x0, x0, vr))
        a("v_mul_f32 v%d, v%d, v%d" % (x1, x1, vr))
        rnd2(a, vpk, x0, x1)


def wave_sum2(a, va, vb, s0):
    for pat in ("quad_perm:[1,0,3,2]", "quad_perm:[2,3,0,1]", "row_half_mirror", "row_mirror"):
        a("s_nop 0")
        a("v_add_f32_dpp v%d, v%d, v%d %s row_mask:0xf bank_mask:0xf" % (va, va, va, pat))
        a("v_add_f32_dpp v%d, v%d, v%d %s row_mask:0xf bank_mask:0xf" % (vb, vb, vb, pat))
    a("s_nop 0")
    for i in range(4):
        a("v_readlane_b32 s%d, v%d, %d" % (s0+i, va, 16*i))
    for i in range(4):
        a("v_readlane_b32 s%d, v%d, %d" % (s0+4+i, vb, 16*i))
    a("v_mov_b32 v%d, s%d" % (va, s0))
    a("v_mov_b32 v%d, s%d" % (vb, s0+4))
    for i in range(1, 4):
        a("v_add_f32 v%d, s%d, v%d" % (va, s0+i, va))
        a("v_add_f32 v%d, s%d, v%d" % (vb, s0+4+i, vb))

def ln_stats(a, xs, n, vt, vm, vr, vpk, s0, valid=None, nvalid_tail=None):
    a("v_add_f32 v%d, v%d, v%d" % (vm, xs[0], xs[1]))
    a("v_mul_f32 v%d, v%d, v%d" % (vr, xs[0], xs[0]))
    a("v_fmac_f32 v%d, v%d, v%d" % (vr, xs[1], xs[1]))
    for x in xs[2:]:
        a("v_add_f32 v%d, v%d, v%d" % (vm, vm, x))
        a("v_fmac_f32 v%d, v%d, v%d" % (vr, x, x))
    a("s_nop 0")
    wave_sum2(a, vm, vr, s0)
    a("v_mul_f32 v%d, 0x%08x, v%d" % (vm, f2u(1.0/n), vm))
    a("v_mul_f32 v%d, 0x%08x, v%d" % (vr, f2u(1.0/n), vr))
    a("v_fma_f32 v%d, -v%d, v%d, v%d" % (vr, vm, vm, vr))
    a("v_max_f32 v%d, 0, v%d" % (vr, vr))
    rnd2(a, vpk, vm, vr)
    a("v_add_f32 v%d, 0x%08x, v%d" % (vr, f2u(1e-5), vr))
    a("v_cvt_pk_bf16_f32 v%d, v%d, v%d" % (vpk, vr, vr))
    a("v_lshlrev_b32 v%d, 16, v%d" % (vr, vpk))
    a("v_sqrt_f32 v%d, v%d" % (vr, vr))
    a("s_nop 0")
    a("v_cvt_pk_bf16_f32 v%d, v%d, v%d" % (vpk, vr, vr))
    a("v_lshlrev_b32 v%d, 16, v%d" % (vr, vpk))
    a("v_rcp_f32 v%d, v%d" % (vr, vr))
    a("s_nop 0")

import struct
def f2u(f):
    return struct.unpack("<I", struct.pack("<f", f))[0]

def gen_e(a, name, src):
    srcspec, dstname = src
    begin_kernel(a, name)
    end = a.newlabel("Lend")
    a("s_cmp_ge_u32 s2, %d" % (S//16))
    a("s_cbranch_scc1 %s" % end)
    load_ptr(a, 4, D_WS)
    if srcspec[0] == 'in':
        load_ptr(a, 6, srcspec[1])
    a("s_waitcnt lgkmcnt(0)")
    if srcspec[0] == 'in':
        srd_from(a, 8, 6, 0, S*D*2)
    else:
        srd_from(a, 8, 4, WS[srcspec[1]], S*D*2)
    srd_from(a, 12, 4, WS['Y'], S*D*2)
    srd_from(a, 16, 4, WS[dstname], S*D*2)
    srd_from(a, 20, 4, WS['XN'], S*D*2)
    a("v_lshrrev_b32 v1, 6, v0")
    a("s_lshl_b32 s3, s2, 4")
    a("v_add_u32 v1, s3, v1")
    a("v_and_b32 v2, 63, v0")
    a("v_lshlrev_b32 v3, 3, v1")
    a("v_lshl_add_u32 v3, v2, 14, v3")
    a("v_mul_u32_u24 v1, %d, v1" % (D*2))
    a("v_lshl_add_u32 v1, v2, 3, v1")
    a("v_cmp_gt_u32 vcc, 32, v2")
    a("v_cndmask_b32 v58, 0, 1.0, vcc")
    a("s_mov_b64 s[30:31], vcc")
    for r in (8, 9, 14, 15): a("v_mov_b32 v%d, 0" % r)
    a("v_add_u32 v59, 0x%x, v3" % (64*16384))
    a("v_add_u32 v60, 0x%x, v3" % (128*16384))
    a("buffer_load_dwordx2 v[4:5], v1, s[8:11], 0 offen")
    a("buffer_load_dwordx2 v[6:7], v1, s[8:11], 0 offen offset:512")
    a("buffer_load_dwordx2 v[10:11], v3, s[12:15], 0 offen")
    a("buffer_load_dwordx2 v[12:13], v59, s[12:15], 0 offen")
    a("s_mov_b64 exec, s[30:31]")
    a("buffer_load_dwordx2 v[8:9], v1, s[8:11], 0 offen offset:1024")
    a("buffer_load_dwordx2 v[14:15], v60, s[12:15], 0 offen")
    a("s_mov_b64 exec, -1")
    X = list(range(20, 32)); L = list(range(32, 44)); Yv = list(range(44, 56))
    a("s_waitcnt vmcnt(0)")
    for i in range(6):
        unpack(a, X[2*i], X[2*i+1], 4+i)
        a("v_mov_b32 v%d, v%d" % (L[2*i], X[2*i]))
        a("v_mov_b32 v%d, v%d" % (L[2*i+1], X[2*i+1]))
    layernorm_regs(a, L, D, 61, 62, 63, 57, 32, valid=58, nvalid_tail=4)
    for i in range(6):
        unpack(a, Yv[2*i], Yv[2*i+1], 10+i)
    for i in range(0, 12, 2):
        a("v_mul_f32 v%d, v%d, v%d" % (L[i], L[i], Yv[i]))
        a("v_mul_f32 v%d, v%d, v%d" % (L[i+1], L[i+1], Yv[i+1]))
        rnd2(a, 57, L[i], L[i+1])
        a("v_add_f32 v%d, v%d, v%d" % (X[i], X[i], L[i]))
        a("v_add_f32 v%d, v%d, v%d" % (X[i+1], X[i+1], L[i+1]))
        rnd2(a, 4+i//2, X[i], X[i+1])
    a("buffer_store_dwordx2 v[4:5], v1, s[16:19], 0 offen")
    a("buffer_store_dwordx2 v[6:7], v1, s[16:19], 0 offen offset:512")
    a("s_mov_b64 exec, s[30:31]")
    a("buffer_store_dwordx2 v[8:9], v1, s[16:19], 0 offen offset:1024")
    a("s_mov_b64 exec, -1")
    layernorm_regs(a, X, D, 61, 62, 63, 57, 32, valid=58, nvalid_tail=4)
    for i in range(6):
        a("v_cvt_pk_bf16_f32 v%d, v%d, v%d" % (10+i, X[2*i], X[2*i+1]))
    a("buffer_store_dwordx2 v[10:11], v1, s[20:23], 0 offen")
    a("buffer_store_dwordx2 v[12:13], v1, s[20:23], 0 offen offset:512")
    a("s_mov_b64 exec, s[30:31]")
    a("buffer_store_dwordx2 v[14:15], v1, s[20:23], 0 offen offset:1024")
    a.label(end)
    end_kernel(a, name, 64, 40)

LN2_ROWS = 16
LN2_PITCH = 48
def gen_ln2(a, name):
    begin_kernel(a, name)
    end = a.newlabel("Lend")
    a("s_cmp_ge_u32 s2, %d" % (S//LN2_ROWS))
    a("s_cbranch_scc1 %s" % end)
    load_ptr(a, 4, D_WS)
    a("s_waitcnt lgkmcnt(0)")
    srd_from(a, 8, 4, WS['Z'], S*F*2)
    srd_from(a, 12, 4, WS['Z2T'], FH*S*2)
    a("v_and_b32 v2, 63, v0")
    a("v_lshrrev_b32 v3, 6, v0")
    a("v_cmp_gt_u32 vcc, 54, v2")
    a("v_cndmask_b32 v4, 0, 1.0, vcc")
    a("s_mov_b64 s[30:31], vcc")
    a("s_mul_i32 s3, s2, %d" % (16*F*2))
    a("s_add_u32 s3, s3, %d" % (FH*2))
    a("v_mul_u32_u24 v7, %d, v3" % (F*2))
    a("v_lshl_add_u32 v7, v2, 4, v7")
    X = list(range(24, 40))
    for i in range(8):
        a("v_mov_b32 v%d, 0" % (12+i))
    a("s_mov_b64 exec, s[30:31]")
    a("buffer_load_dwordx4 v[12:15], v7, s[8:11], s3 offen")
    a("buffer_load_dwordx4 v[16:19], v7, s[8:11], s3 offen offset:%d" % (54*16))
    a("s_mov_b64 exec, -1")
    a("v_lshlrev_b32 v8, 1, v0")
    PB = 48
    for r in range(16):
        if r and r % 1 == 0 and (r*F*2) > 4095 and r % 1 == 0:
            pass
        a("s_add_u32 s24, s3, %d" % (r*F*2))
        a("buffer_load_ushort v%d, v8, s[8:11], s24 offen" % (PB+r))
    a("s_waitcnt vmcnt(16)")
    for i in range(8):
        unpack(a, X[2*i], X[2*i+1], 12+i)
    ln_stats(a, X, FH, 40, 41, 42, 43, 32, valid=4)
    a("v_lshlrev_b32 v9, 3, v3")
    a("v_mov_b32 v44, v41"); a("v_mov_b32 v45, v42")
    a("ds_write_b64 v9, v[44:45]")
    a("s_waitcnt lgkmcnt(0)")
    a("s_barrier")
    a("v_cmp_gt_u32 vcc, %d, v0" % FH)
    a("s_and_saveexec_b64 s[28:29], vcc")
    a("s_cbranch_execz %s" % end)
    a("v_mov_b32 v9, 0")
    for i in range(8):
        a("ds_read_b128 v[%d:%d], v9 offset:%d" % (64+4*i, 67+4*i, 16*i))
    a("s_waitcnt vmcnt(0) lgkmcnt(0)")
    for r in range(0, 16, 2):
        x0, x1 = PB+r, PB+r+1
        a("v_lshlrev_b32 v%d, 16, v%d" % (x0, x0))
        a("v_lshlrev_b32 v%d, 16, v%d" % (x1, x1))
        a("v_sub_f32 v%d, v%d, v%d" % (x0, x0, 64+2*r))
        a("v_sub_f32 v%d, v%d, v%d" % (x1, x1, 64+2*r+2))
        rnd2(a, 43, x0, x1)
        a("v_mul_f32 v%d, v%d, v%d" % (x0, x0, 64+2*r+1))
        a("v_mul_f32 v%d, v%d, v%d" % (x1, x1, 64+2*r+3))
        a("v_cvt_pk_bf16_f32 v%d, v%d, v%d" % (24+r//2, x0, x1))
    a("v_lshlrev_b32 v12, 5, v0")
    a("s_mul_i32 s3, s2, %d" % (FH*32))
    a("buffer_store_dwordx4 v[24:27], v12, s[12:15], s3 offen")
    a("buffer_store_dwordx4 v[28:31], v12, s[12:15], s3 offen offset:16")
    a.label(end)
    end_kernel(a, name, 96, 40)

SB0 = [70]
def stamp(a, i):
    if 'stamp' in EXP:
        a("s_memtime s[%d:%d]" % (SB0[0]+2*i, SB0[0]+1+2*i))
        a("s_waitcnt lgkmcnt(0)")
def stamp_out(a, n, swave=44):
    if 'stamp' not in EXP: return
    a("s_load_dwordx2 s[64:65], s[0:1], %d" % D_DBG)
    a("s_waitcnt lgkmcnt(0)")
    a("s_mov_b32 s66, 256"); a("s_mov_b32 s67, 0x20000")
    l = a.newlabel("Lst")
    a("s_cmp_lg_u32 s2, 8")
    a("s_cbranch_scc1 %s" % l)
    a("s_cmp_lg_u32 s%d, 0" % swave)
    a("s_cbranch_scc1 %s" % l)
    a("v_mov_b32 v1, 0")
    for i in range(n):
        a("s_sub_u32 s63, s%d, s%d" % (SB0[0]+2*i, SB0[0]))
        a("v_mov_b32 v2, s63")
        a("buffer_store_dword v2, v1, s[64:67], 0 offen offset:%d" % (4*i))
    a.label(l)
def gen_gemm(a, name, Pd, Qd, K, TP, TQ, nP, nQ, epi, epi_args, NS=4, WPn=2, WQn=2, xcd=None, nL=4):
    nW = WPn*WQn
    begin_kernel(a, name)
    end = a.newlabel("Lend"); lload = a.newlabel("Lload")
    gp, gq = xcd
    assert gp*gq == 8 and nQ % gq == 0
    ppg = (nP + gp - 1)//gp
    qpg = nQ//gq
    nWG = 8*ppg*qpg
    a("s_cmp_ge_u32 s2, %d" % nWG)
    a("s_cbranch_scc1 %s" % end)
    load_ptr(a, 4, D_WS)
    sl = 6
    ptrs = {}
    for d in (Pd, Qd):
        if d[0] == 'in':
            load_ptr(a, sl, d[1]); ptrs[d[1]] = sl; sl += 2
    for slot in epi_args.get('in_slots', []):
        load_ptr(a, sl, slot); ptrs[slot] = sl; sl += 2
    assert sl <= 16
    a("s_and_b32 s40, s2, 7")
    a("s_lshr_b32 s41, s2, 3")
    a("s_and_b32 s42, s40, %d" % (gp-1))
    a("s_lshr_b32 s43, s40, %d" % int(math.log2(gp)))
    a("s_mov_b32 s45, 0x%x" % ((1 << 32)//ppg + 1))
    a("s_mul_hi_u32 s46, s41, s45")
    a("s_mul_i32 s45, s46, %d" % ppg)
    a("s_sub_u32 s45, s41, s45")
    a("s_mul_i32 s42, s42, %d" % ppg)
    a("s_add_u32 s42, s42, s45")
    a("s_mul_i32 s43, s43, %d" % qpg)
    a("s_add_u32 s43, s43, s46")
    a("s_cmp_ge_u32 s42, %d" % nP)
    a("s_cbranch_scc1 %s" % end)
    a("s_mul_i32 s42, s42, %d" % TP)
    a("s_mul_i32 s43, s43, %d" % TQ)
    a("v_lshrrev_b32 v1, 6, v0")
    a("s_nop 0")
    a("v_readfirstlane_b32 s44, v1")
    a("v_and_b32 v2, 63, v0")
    a("v_lshrrev_b32 v5, 4, v2")
    a("s_waitcnt lgkmcnt(0)")
    stamp(a, 0)
    SB = (TP+TQ)*128
    nsteps = (K + 63)//64
    lastpartial = (K % 64) != 0
    npro = min(NS-1, nsteps)
    lpf = a.newlabel("Lpf")
    a("s_cmp_ge_u32 s44, %d" % (nW+nL))
    a("s_cbranch_scc1 %s" % lpf)
    a("s_cmp_ge_u32 s44, %d" % nW)
    a("s_cbranch_scc1 %s" % lload)
    wp, wq = TP//WPn, TQ//WQn
    nPf, nQf = wp//16, wq//16
    nH = (NS+1)//2
    VA = 8
    def vaddr(isQ, kk, half): return VA + ((2 if isQ else 0) + kk)*nH + half
    a("v_and_b32 v3, 15, v2")
    a("v_lshrrev_b32 v4, 1, v3")
    a("v_and_b32 v4, 7, v4")
    a("v_xor_b32 v4, v4, v5")
    a("v_lshlrev_b32 v4, 4, v4")
    a("v_lshl_add_u32 v4, v3, 7, v4")
    a("s_and_b32 s45, s44, %d" % (WPn-1))
    a("s_lshr_b32 s46, s44, %d" % int(math.log2(WPn)))
    a("s_mul_i32 s47, s45, %d" % (wp*128))
    a("s_mul_i32 s48, s46, %d" % (wq*128))
    a("s_add_u32 s48, s48, %d" % (TP*128))
    for isQ in (0, 1):
        for kk in range(2):
            for half in range(nH):
                v = vaddr(isQ, kk, half)
                a("v_add_u32 v%d, s%d, v4" % (v, 48 if isQ else 47))
                if kk: a("v_xor_b32 v%d, 64, v%d" % (v, v))
                if half: a("v_add_u32 v%d, %d, v%d" % (v, 2*SB*half, v))
    assert SB + max(nPf, nQf)*2048 < 65536
    VF = (VA + 4*nH + 3)//4*4
    def vPf(kk, i): return VF + (kk*nPf + i)*4
    def vQf(kk, j): return VF + (2*nPf + kk*nQf + j)*4
    VACC = VF + 2*(nPf+nQf)*4
    def acc(i, j): return VACC + (i*nQf + j)*4
    VEND = VACC + nPf*nQf*4
    for r in range(VACC, VEND):
        a("v_mov_b32 v%d, 0" % r)
    def reads(step, kk):
        if 'noread' in EXP: return
        st = step % NS
        half = st//2; soff = (st % 2)*SB
        order = [('P', 0)] + [('Q', j) for j in range(nQf)] + [('P', i) for i in range(1, nPf)]
        for (t, i) in order:
            if t == 'P':
                a("ds_read_b128 v[%d:%d], v%d offset:%d" % (vPf(kk,i), vPf(kk,i)+3, vaddr(0,kk,half), soff + i*2048))
            else:
                a("ds_read_b128 v[%d:%d], v%d offset:%d" % (vQf(kk,i), vQf(kk,i)+3, vaddr(1,kk,half), soff + i*2048))
    def mfmas(kk):
        if 'nomfma' in EXP: return
        for i in range(nPf):
            for j in range(nQf):
                a("v_mfma_f32_16x16x32_bf16 v[%d:%d], v[%d:%d], v[%d:%d], v[%d:%d]" % (
                    acc(i,j), acc(i,j)+3, vPf(kk,i), vPf(kk,i)+3, vQf(kk,j), vQf(kk,j)+3, acc(i,j), acc(i,j)+3))
    nfr = nPf + nQf
    VPRE = VEND
    ctx = dict(a=a, acc=acc, nPf=nPf, nQf=nQf, wp=wp, wq=wq, VF=VF, VACC=VACC, ptrs=ptrs, VPRE=VPRE)
    a("v_and_b32 v3, 15, v2")
    a("s_mul_i32 s47, s46, %d" % wq)
    a("s_add_u32 s47, s47, s43")
    a("v_add_u32 v3, s47, v3")
    a("v_lshrrev_b32 v4, 4, v2")
    a("v_lshlrev_b32 v4, 2, v4")
    a("s_mul_i32 s47, s45, %d" % wp)
    a("s_add_u32 s47, s47, s42")
    a("v_add_u32 v4, s47, v4")
    n0 = len(a.lines)
    VEND += epi_args['pre'](ctx, epi_args)
    deferred = a.lines[n0:]; del a.lines[n0:]
    stamp(a, 1)
    a("s_barrier")
    stamp(a, 2)
    reads(0, 0)
    for k in range(nsteps):
        has2 = not (lastpartial and k == nsteps-1)
        if has2:
            reads(k, 1)
            a("s_waitcnt lgkmcnt(%d)" % nfr)
        else:
            a("s_waitcnt lgkmcnt(0)")
        mfmas(0)
        if k+1 < nsteps:
            a("s_waitcnt lgkmcnt(0)")
            a("s_barrier")
            reads(k+1, 0)
            if k == 2: a.lines += deferred
            if has2: mfmas(1)
        elif has2:
            a("s_waitcnt lgkmcnt(0)")
            mfmas(1)
    a("s_nop 15")
    stamp(a, 3)
    if 'noepi' not in EXP: epi(ctx, epi_args)
    stamp(a, 4)
    if 'stamp' in EXP: a("s_waitcnt vmcnt(0)")
    stamp(a, 5)
    stamp_out(a, 6)
    a("s_branch %s" % end)
    a.label(lload)
    def mk(sd, d):
        if d[0] == 'in': srd_from(a, sd, ptrs[d[1]], 0, d[3])
        else: srd_from(a, sd, 4, WS[d[1]], d[3])
    mk(16, Pd); mk(20, Qd)
    assert TP % (8*nL) == 0 and TQ % (8*nL) == 0
    nI = (TP+TQ)//(8*nL)
    nIP = TP//(8*nL)
    VD = 8
    a("s_sub_u32 s44, s44, %d" % nW)
    a("v_lshrrev_b32 v3, 3, v2")
    a("v_and_b32 v4, 7, v2")
    a("s_lshl_b32 s45, s44, 3")
    a("s_lshl_b32 s46, s44, 2")
    for j in range(nI):
        isP = j < nIP
        jj = j if isP else j - nIP
        pitch = Pd[2] if isP else Qd[2]
        t0 = 42 if isP else 43
        a("v_add_u32 v6, s46, v5")
        if (4*jj*nL) % 8: a("v_add_u32 v6, %d, v6" % ((4*jj*nL) % 8))
        a("v_and_b32 v6, 7, v6")
        a("v_xor_b32 v6, v6, v4")
        a("v_add_u32 v7, s45, v3")
        a("v_add_u32 v7, s%d, v7" % t0)
        if jj: a("v_add_u32 v7, %d, v7" % (8*nL*jj))
        if isP and epi_args.get('pblocked'):
            a("v_lshlrev_b32 v7, 5, v7")
            a("v_lshrrev_b32 v%d, 1, v6" % (VD+j))
            a("v_mul_u32_u24 v%d, %d, v%d" % (VD+j, FH*32, VD+j))
            a("v_add_u32 v7, v7, v%d" % (VD+j))
            a("v_and_b32 v6, 1, v6")
            a("v_lshl_add_u32 v%d, v6, 4, v7" % (VD+j))
        else:
            a("s_mov_b32 s47, %d" % pitch)
            a("v_mul_lo_u32 v7, v7, s47")
            a("v_lshl_add_u32 v%d, v6, 4, v7" % (VD+j))
    a("s_lshl_b32 s49, s44, 10")
    def dma_stage(step):
        st = step % NS
        a("s_mov_b32 s50, %d" % (step*128))
        a("s_mov_b32 s51, %d" % (step*4*FH*32))
        for j in range(nI):
            if 'nodma' in EXP: break
            isP = j < nIP
            a("s_add_u32 m0, s49, %d" % (st*SB + j*1024*nL))
            a("s_nop 0")
            a("buffer_load_dwordx4 v%d, s[%d:%d], s%d offen lds" % (VD+j, 16 if isP else 20, 19 if isP else 23, 51 if (isP and epi_args.get('pblocked')) else 50))
    for st in range(npro): dma_stage(st)
    issued = npro
    assert nI*(NS-1) <= 63
    a("s_waitcnt vmcnt(%d)" % (nI*(issued-1)))
    a("s_barrier")
    for k in range(nsteps-1):
        a("s_waitcnt vmcnt(%d)" % (nI*(issued-1-(k+1))))
        a("s_barrier")
        if issued < nsteps:
            dma_stage(issued); issued += 1
    a("s_branch %s" % end)
    a.label(lpf)
    mk(16, Pd); mk(20, Qd)
    pf = []
    vr = 8
    blocked = epi_args.get('pblocked')
    for (isP, T, pitch, t0) in ((True, TP, Pd[2], 42), (False, TQ, Qd[2], 43)):
        if isP and blocked:
            nl = TP*32*4//128
            lpb = TP*32//128
            for i in range((nl+63)//64):
                a("v_add_u32 v3, %d, v2" % (64*i))
                a("v_min_u32 v3, %d, v3" % (nl-1))
                a("v_mul_u32_u24 v4, 0x%x, v3" % ((1 << 20)//lpb + 1))
                a("v_lshrrev_b32 v4, 20, v4")
                a("v_mul_u32_u24 v6, %d, v4" % lpb)
                a("v_sub_u32 v6, v3, v6")
                a("v_mul_u32_u24 v4, %d, v4" % (FH*32))
                a("v_lshl_add_u32 v4, v6, 7, v4")
                a("s_lshl_b32 s47, s42, 5")
                a("v_add_u32 v%d, s47, v4" % vr)
                pf.append((vr, 16, 51)); vr += 1
        else:
            for i in range((T+63)//64):
                a("v_add_u32 v3, %d, v2" % (64*i))
                a("v_min_u32 v3, %d, v3" % (T-1))
                a("v_add_u32 v3, s%d, v3" % t0)
                a("s_mov_b32 s47, %d" % pitch)
                a("v_mul_lo_u32 v%d, v3, s47" % vr)
                pf.append((vr, 16 if isP else 20, 50)); vr += 1
    def pf_stage(step):
        if 'pf' not in EXP: return
        a("s_mov_b32 s50, %d" % (step*128))
        a("s_mov_b32 s51, %d" % (step*4*FH*32))
        for (v, sd, sr) in pf:
            a("buffer_load_dword v1, v%d, s[%d:%d], s%d offen" % (v, sd, sd+3, sr))
    PD0 = epi_args.get('pd0', 6); PR = epi_args.get('pr', 3)
    nxt = npro
    for _ in range(PD0):
        if nxt < nsteps: pf_stage(nxt); nxt += 1
    a("s_barrier")
    for k in range(nsteps-1):
        for _ in range(PR):
            if nxt < nsteps:
                a("s_waitcnt vmcnt(40)")
                pf_stage(nxt); nxt += 1
        a("s_barrier")
    a.label(end)
    end_kernel(a, name, max(VEND, VD+nI), 96)
    return (nWG, 64*(nW+nL+(1 if 'pf' in EXP else 0)), NS*SB)

def pre_g1(c, args):
    a = c['a']
    srd_from(a, 24, 4, WS['Z'], S*F*2)
    a("v_mul_u32_u24 v5, %d, v3" % (F*2))
    a("v_lshl_add_u32 v5, v4, 1, v5")
    return 0

def epi_g1(c, args):
    a = c['a']
    T = c['VF']
    K0 = T; K1 = T+2; ONE = T+4
    a("v_mov_b32 v%d, 0x%08x" % (K0, f2u(-2.302208198))); a("v_mov_b32 v%d, 0x%08x" % (K0+1, f2u(-2.302208198)))
    a("v_mov_b32 v%d, 0x%08x" % (K1, f2u(-2.302208198*0.044715))); a("v_mov_b32 v%d, 0x%08x" % (K1+1, f2u(-2.302208198*0.044715)))
    a("v_mov_b32 v%d, 1.0" % ONE); a("v_mov_b32 v%d, 1.0" % (ONE+1))
    U = T+8
    for j in range(c['nQf']):
        for i in range(c['nPf']):
            r = c['acc'](i, j)
            rnd2(a, U+4, r, r+1); rnd2(a, U+4, r+2, r+3)
            for h in range(2):
                x = r+2*h; t = U+2*h
                a("v_pk_mul_f32 v[%d:%d], v[%d:%d], v[%d:%d]" % (t, t+1, x, x+1, x, x+1))
                a("v_pk_fma_f32 v[%d:%d], v[%d:%d], v[%d:%d], v[%d:%d]" % (t, t+1, t, t+1, K1, K1+1, K0, K0+1))
                a("v_pk_mul_f32 v[%d:%d], v[%d:%d], v[%d:%d]" % (t, t+1, t, t+1, x, x+1))
            for e in range(4):
                a("v_exp_f32 v%d, v%d" % (U+e, U+e))
            a("s_nop 0")
            for h in range(2):
                t = U+2*h
                a("v_pk_add_f32 v[%d:%d], v[%d:%d], v[%d:%d]" % (t, t+1, t, t+1, ONE, ONE+1))
            for e in range(4):
                a("v_rcp_f32 v%d, v%d" % (U+e, U+e))
            a("s_nop 0")
            for h in range(2):
                x = r+2*h; t = U+2*h
                a("v_pk_mul_f32 v[%d:%d], v[%d:%d], v[%d:%d]" % (x, x+1, x, x+1, t, t+1))
            a("v_cvt_pk_bf16_f32 v%d, v%d, v%d" % (r, r, r+1))
            a("v_cvt_pk_bf16_f32 v%d, v%d, v%d" % (r+1, r+2, r+3))
            a("buffer_store_dwordx2 v[%d:%d], v5, s[24:27], 0 offen offset:%d" % (r, r+1, i*32))
        a("v_add_u32 v5, %d, v5" % (16*F*2))

def pre_g2(c, args):
    a = c['a']
    srd_from(a, 24, 4, WS['Z'], S*F*2)
    srd_from(a, 28, 4, WS['H'], S*FH*2)
    srd_from(a, 32, c['ptrs'][B_BSP], 0, S*2)
    a("v_mul_u32_u24 v5, %d, v3" % (F*2))
    a("v_lshl_add_u32 v5, v4, 1, v5")
    a("v_mul_u32_u24 v6, %d, v3" % (FH*2))
    a("v_lshl_add_u32 v6, v4, 1, v6")
    a("v_lshlrev_b32 v7, 1, v3")
    T = c['VPRE']
    nPf, nQf = c['nPf'], c['nQf']
    for j in range(nQf):
        a("buffer_load_ushort v%d, v7, s[32:35], 0 offen offset:%d" % (T+j, 32*j))
    for j in range(nQf):
        for i in range(nPf):
            z = T+4+(j*nPf+i)*2
            a("buffer_load_dwordx2 v[%d:%d], v5, s[24:27], 0 offen offset:%d" % (z, z+1, i*32))
        a("v_add_u32 v5, %d, v5" % (16*F*2))
    return 4 + nPf*nQf*2

def epi_g2(c, args):
    a = c['a']
    T = c['VPRE']
    nPf, nQf = c['nPf'], c['nQf']
    a("s_waitcnt vmcnt(0)")
    U = c['VF']
    for j in range(nQf):
        a("v_lshlrev_b32 v%d, 16, v%d" % (T+j, T+j))
        for i in range(nPf):
            r = c['acc'](i, j); z = T+4+(j*nPf+i)*2
            rnd2(a, U, r, r+1); rnd2(a, U, r+2, r+3)
            for e in range(4):
                a("v_add_f32 v%d, v%d, v%d" % (r+e, r+e, T+j))
            rnd2(a, U, r, r+1); rnd2(a, U, r+2, r+3)
            unpack(a, U, U+1, z); unpack(a, U+2, U+3, z+1)
            for h in range(2):
                a("v_pk_mul_f32 v[%d:%d], v[%d:%d], v[%d:%d]" % (r+2*h, r+2*h+1, r+2*h, r+2*h+1, U+2*h, U+2*h+1))
            a("v_cvt_pk_bf16_f32 v%d, v%d, v%d" % (r, r, r+1))
            a("v_cvt_pk_bf16_f32 v%d, v%d, v%d" % (r+1, r+2, r+3))
            a("buffer_store_dwordx2 v[%d:%d], v6, s[28:31], 0 offen offset:%d" % (r, r+1, i*32))
        a("v_add_u32 v6, %d, v6" % (16*FH*2))

def pre_g3(c, args):
    a = c['a']
    srd_from(a, 24, 4, WS[args['xin']], S*D*2)
    if args['out'] == 'dout':
        srd_from(a, 28, c['ptrs'][D_OUT], 0, S*D*2)
    else:
        srd_from(a, 28, 4, WS[args['out']], S*D*2)
    a("v_mul_u32_u24 v5, %d, v3" % (D*2))
    a("v_lshl_add_u32 v5, v4, 1, v5")
    a("v_mov_b32 v6, v5")
    T = c['VPRE']
    nPf, nQf = c['nPf'], c['nQf']
    for j in range(nQf):
        for i in range(nPf):
            z = T+(j*nPf+i)*2
            a("buffer_load_dwordx2 v[%d:%d], v5, s[24:27], 0 offen offset:%d" % (z, z+1, i*32))
        a("v_add_u32 v5, %d, v5" % (16*D*2))
    return nPf*nQf*2

def epi_g3(c, args):
    a = c['a']
    T = c['VPRE']
    nPf, nQf = c['nPf'], c['nQf']
    a("s_waitcnt vmcnt(0)")
    U = c['VF']
    for j in range(nQf):
        for i in range(nPf):
            r = c['acc'](i, j); z = T+(j*nPf+i)*2
            rnd2(a, U, r, r+1); rnd2(a, U, r+2, r+3)
            unpack(a, U, U+1, z); unpack(a, U+2, U+3, z+1)
            for h in range(2):
                a("v_pk_add_f32 v[%d:%d], v[%d:%d], v[%d:%d]" % (r+2*h, r+2*h+1, r+2*h, r+2*h+1, U+2*h, U+2*h+1))
            a("v_cvt_pk_bf16_f32 v%d, v%d, v%d" % (r, r, r+1))
            a("v_cvt_pk_bf16_f32 v%d, v%d, v%d" % (r+1, r+2, r+3))
            a("buffer_store_dwordx2 v[%d:%d], v6, s[28:31], 0 offen offset:%d" % (r, r+1, i*32))
        a("v_add_u32 v6, %d, v6" % (16*D*2))

NKV = S//32
NT_IN = (D//32)*(F//64)
NT_OUT = (FH//32)*(D//64)
COPYSZ = 4160
KVSZ = 96*80
KVIMG = 64*80
CHSZ = 8*COPYSZ + KVSZ
PR_ROWS = 16
def gen_prepa(a, name):
    begin_kernel(a, name)
    end = a.newlabel("Lend")
    a("s_cmp_ge_u32 s2, %d" % (S//PR_ROWS))
    a("s_cbranch_scc1 %s" % end)
    load_ptr(a, 4, D_WS)
    load_ptr(a, 6, A_K); load_ptr(a, 8, A_V); load_ptr(a, 10, A_SHK)
    a("s_waitcnt lgkmcnt(0)")
    srd_from(a, 16, 6, 0, S*D*2)
    srd_from(a, 20, 8, 0, S*D*2)
    srd_from(a, 24, 10, 0, D*8)
    srd_from(a, 28, 4, WS['KVR'], D*KVIMG)
    R = PR_ROWS
    a("s_mul_i32 s3, s2, %d" % (R*D*2))
    a("v_lshlrev_b32 v1, 2, v0")
    a("v_add_u32 v1, s3, v1")
    a("v_subrev_u32 v2, %d, v1" % (3*D*2))
    a("v_lshlrev_b32 v3, 4, v0")
    a("buffer_load_dwordx4 v[4:7], v3, s[24:27], 0 offen")
    KB = 16; VB = KB + R + 3
    def ld(dst, vbase, i, srd):
        if i % 3 == 0 and i:
            a("v_add_u32 v%d, %d, v%d" % (vbase, 3*1280, vbase))
        a("buffer_load_dword v%d, v%d, s[%d:%d], 0 offen offset:%d" % (dst, vbase, srd, srd+3, (i % 3)*1280))
    for i in range(R+3): ld(KB+i, 2, i, 16)
    for i in range(R): ld(VB+i, 1, i, 20)
    a("s_waitcnt vmcnt(0)")
    W = 60; K0 = 70; K1 = K0 + R + 3; O0 = K1 + R + 3; O1 = O0 + R
    for ch in range(2):
        for t in range(4):
            src = 4 + 2*ch + t//2
            if t % 2 == 0: a("v_lshlrev_b32 v%d, 16, v%d" % (W+4*ch+t, src))
            else: a("v_and_b32 v%d, 0xffff0000, v%d" % (W+4*ch+t, src))
    for i in range(R+3): unpack(a, K0+i, K1+i, KB+i)
    for r in range(R):
        for t in range(4):
            a("v_mul_f32 v8, v%d, v%d" % (W+3-t, K0+r+t))
            a("v_mul_f32 v9, v%d, v%d" % (W+4+3-t, K1+r+t))
            rnd2(a, 10, 8, 9)
            if t == 0:
                a("v_mov_b32 v%d, v8" % (O0+r)); a("v_mov_b32 v%d, v9" % (O1+r))
            else:
                a("v_add_f32 v%d, v%d, v8" % (O0+r, O0+r)); a("v_add_f32 v%d, v%d, v9" % (O1+r, O1+r))
                rnd2(a, 10, O0+r, O1+r)
        unpack(a, 8, 9, VB+r)
        a("v_mul_f32 v%d, v%d, v8" % (O0+r, O0+r)); a("v_mul_f32 v%d, v%d, v9" % (O1+r, O1+r))
    for ch in range(2):
        b = O0 if ch == 0 else O1
        for m in range(R//2):
            a("v_cvt_pk_bf16_f32 v%d, v%d, v%d" % (16+8*ch+m, b+R-1-2*m, b+R-2-2*m))
    a("s_lshr_b32 s3, s2, 1")
    a("s_mul_i32 s3, s3, %d" % (D*64))
    a("s_and_b32 s12, s2, 1")
    a("s_xor_b32 s12, s12, 1")
    a("s_lshl_b32 s12, s12, 5")
    a("s_add_u32 s3, s3, s12")
    a("v_lshlrev_b32 v3, 7, v0")
    a("v_add_u32 v3, s3, v3")
    for ch in range(2):
        for m in range(2):
            a("buffer_store_dwordx4 v[%d:%d], v3, s[28:31], 0 offen offset:%d" % (16+8*ch+4*m, 19+8*ch+4*m, 64*ch+16*m))
    a.label(end)
    end_kernel(a, name, O1+R, 40)

NCH = 4
NTRW = 96
def gen_conv(a, name):
    begin_kernel(a, name)
    end = a.newlabel("Lend"); ltr = a.newlabel("Ltr")
    a("s_cmp_ge_u32 s2, %d" % (D//NCH + NTRW))
    a("s_cbranch_scc1 %s" % end)
    load_ptr(a, 4, D_WS)
    a("s_cmp_ge_u32 s2, %d" % (D//NCH))
    a("s_cbranch_scc1 %s" % ltr)
    load_ptr(a, 12, A_SSMK); load_ptr(a, 14, A_SSMD)
    a("s_waitcnt lgkmcnt(0)")
    srd_from(a, 16, 4, WS['KVR'], D*KVIMG)
    a("s_lshl_b32 s3, s2, 3")
    a("s_add_u32 s14, s14, s3"); a("s_addc_u32 s15, s15, 0")
    a("s_load_dwordx2 s[44:45], s[14:15], 0")
    srd_from(a, 24, 12, 0, D*S*2)
    srd_from(a, 28, 4, WS['Y'], S*D*2)
    a("v_lshrrev_b32 v1, 6, v0")
    a("s_nop 0")
    a("v_readfirstlane_b32 s46, v1")
    a("v_and_b32 v2, 63, v0")
    a("s_and_b32 s47, s46, 3")
    a("s_lshr_b32 s48, s46, 2")
    a("s_mul_i32 s49, s47, %d" % CHSZ)
    SB0[0] = 88
    stamp(a, 0)
    a("s_lshl_b32 s3, s2, 2")
    a("s_add_u32 s3, s3, s47")
    a("s_lshl_b32 s50, s3, 6")
    a("s_mul_i32 s51, s48, 3072")
    a("s_add_u32 s51, s51, s49")
    a("s_add_u32 s51, s51, %d" % (8*COPYSZ))
    a("s_mul_i32 s52, s48, 192")
    for pc in range(3):
        a("v_add_u32 v4, s52, v2")
        if pc: a("v_add_u32 v4, %d, v4" % (64*pc))
        a("v_mul_u32_u24 v5, 0x%x, v4" % 52429)
        a("v_lshrrev_b32 v5, 18, v5")
        a("v_mul_u32_u24 v6, 5, v5")
        a("v_sub_u32 v6, v4, v6")
        a("v_min_u32 v6, 3, v6")
        a("v_sub_u32 v5, 63, v5")
        a("v_mul_u32_u24 v5, %d, v5" % (D*64))
        a("v_lshl_add_u32 v%d, v6, 4, v5" % (90+pc))
    sk = a.newlabel("Lsk")
    for pc in range(3):
        if pc == 2:
            a("s_cmp_eq_u32 s48, 1")
            a("s_cbranch_scc1 %s" % sk)
        a("s_add_u32 m0, s51, %d" % (1024*pc))
        a("s_nop 0")
        a("buffer_load_dwordx4 v%d, s[16:19], s50 offen lds" % (90+pc))
    a.label(sk)
    for r in range(4): a("v_mov_b32 v%d, 0" % (84+r))
    for rnd in range(2):
        if rnd:
            a("v_cmp_gt_u32 vcc, 128, v0")
            a("s_and_saveexec_b64 s[58:59], vcc")
        a("v_add_u32 v4, %d, v0" % (512*rnd))
        a("v_mul_u32_u24 v5, 0x%x, v4" % 52429)
        a("v_lshrrev_b32 v5, 23, v5")
        a("v_mul_u32_u24 v6, 160, v5")
        a("v_sub_u32 v6, v4, v6")
        a("v_mul_u32_u24 v5, %d, v5" % CHSZ)
        a("v_lshl_add_u32 v5, v6, 4, v5")
        a("v_add_u32 v5, %d, v5" % (8*COPYSZ + 64*80))
        a("ds_write_b128 v5, v[84:87]")
        if rnd: a("s_mov_b64 exec, -1")
    a("s_lshl_b32 s3, s2, 14")
    for i in range(3):
        b = 12 + 8*i
        for r in range(8): a("v_mov_b32 v%d, 0" % (b+r))
        a("v_add_u32 v4, %d, v0" % (512*i))
        a("v_mul_u32_u24 v5, 0x%x, v4" % 64528)
        a("v_lshrrev_b32 v5, 24, v5")
        a("v_mul_u32_u24 v6, 260, v5")
        a("v_sub_u32 v6, v4, v6")
        a("v_mul_u32_u24 v7, %d, v5" % CHSZ)
        a("v_lshl_add_u32 v%d, v6, 4, v7" % (40+i))
        a("v_lshlrev_b32 v7, 12, v5")
        a("v_add_u32 v7, s3, v7")
        a("v_subrev_u32 v9, 4, v6")
        a("v_lshl_add_u32 v10, v9, 4, v7")
        a("v_cmp_gt_u32 s[60:61], 4, v5")
        a("v_cmp_gt_u32 vcc, 256, v9")
        a("s_and_b64 vcc, vcc, s[60:61]")
        a("s_and_saveexec_b64 s[62:63], vcc")
        a("buffer_load_dwordx4 v[%d:%d], v10, s[24:27], 0 offen" % (b, b+3))
        a("s_mov_b64 exec, -1")
        a("v_add_u32 v9, 1, v9")
        a("v_cmp_gt_u32 vcc, 256, v9")
        a("s_and_b64 vcc, vcc, s[60:61]")
        a("s_and_saveexec_b64 s[62:63], vcc")
        a("buffer_load_dwordx4 v[%d:%d], v10, s[24:27], 0 offen offset:16" % (b+4, b+7))
        a("s_mov_b64 exec, -1")
    stamp(a, 1)
    a("s_waitcnt vmcnt(0) lgkmcnt(0)")
    stamp(a, 2)
    for i in range(3):
        b = 12 + 8*i
        skip = a.newlabel("Lsk")
        if i == 2:
            a("v_cmp_gt_u32 vcc, 16, v0")
            a("s_and_saveexec_b64 s[58:59], vcc")
            a("s_cbranch_execz %s" % skip)
        for r in range(8):
            sh = 1 + r
            o = 44 + 4*(r % 2)
            for m in range(4):
                if sh % 2 == 0:
                    a("v_mov_b32 v%d, v%d" % (o+m, b + sh//2 + m))
                else:
                    lo = b + (sh-1)//2 + m
                    a("v_alignbit_b32 v%d, v%d, v%d, 16" % (o+m, lo+1, lo))
            a("ds_write_b128 v%d, v[%d:%d] offset:%d" % (40+i, o, o+3, r*COPYSZ))
        if i == 2:
            a.label(skip)
            a("s_mov_b64 exec, -1")
    a("s_waitcnt vmcnt(0) lgkmcnt(0)")
    stamp(a, 3)
    a("s_barrier")
    stamp(a, 4)
    a("v_and_b32 v3, 31, v2")
    a("v_lshrrev_b32 v4, 5, v2")
    a("v_and_b32 v5, 7, v3")
    a("v_mul_u32_u24 v5, %d, v5" % COPYSZ)
    a("v_and_b32 v6, 24, v3")
    a("v_lshl_add_u32 v6, v4, 3, v6")
    a("v_lshl_add_u32 v5, v6, 1, v5")
    a("v_add_u32 v5, s49, v5")
    a("s_lshl_b32 s52, s48, 5")
    a("v_add_u32 v7, s52, v3")
    a("v_sub_u32 v8, 63, v7")
    a("v_mul_u32_u24 v8, 80, v8")
    a("v_lshl_add_u32 v8, v4, 4, v8")
    a("v_add_u32 v8, s49, v8")
    a("v_add_u32 v8, %d, v8" % (8*COPYSZ))
    for r in range(16): a("v_mov_b32 v%d, 0" % (96+r))
    a("s_lshl_b32 s53, s48, 3")
    a("s_add_u32 s53, s53, 8")
    UN = 2
    def rd(setb, cbase):
        for c in range(UN):
            for kb in range(2):
                idx = c*2+kb
                a("ds_read_b128 v[%d:%d], v5 offset:%d" % (setb+idx*4, setb+idx*4+3, (cbase+c)*64 + kb*32))
                a("ds_read_b128 v[%d:%d], v8 offset:%d" % (setb+16+idx*4, setb+16+idx*4+3, (cbase+c)*80 + kb*32))
    def mm(setb):
        for idx in range(2*UN):
            a("v_mfma_f32_32x32x16_bf16 v[96:111], v[%d:%d], v[%d:%d], v[96:111]" % (setb+idx*4, setb+idx*4+3, setb+16+idx*4, setb+16+idx*4+3))
    rd(32, 0)
    loop = a.newlabel("Lconv")
    a.label(loop)
    rd(64, UN)
    a("s_waitcnt lgkmcnt(8)")
    mm(32)
    rd(32, 2*UN)
    a("s_waitcnt lgkmcnt(8)")
    mm(64)
    a("v_add_u32 v5, %d, v5" % (2*UN*64))
    a("v_add_u32 v8, %d, v8" % (2*UN*80))
    a("s_sub_u32 s53, s53, 1")
    a("s_cmp_lg_u32 s53, 0")
    a("s_cbranch_scc1 %s" % loop)
    a("s_waitcnt lgkmcnt(0)")
    a("s_nop 15")
    stamp(a, 5)
    a("v_sub_u32 v9, 63, v7")
    a("v_mul_u32_u24 v9, 80, v9")
    a("v_add_u32 v9, s49, v9")
    a("v_lshlrev_b32 v10, 3, v4")
    a("v_sub_u32 v9, v9, v10")
    a("v_add_u32 v9, %d, v9" % (8*COPYSZ + 2*28 - 48))
    for rq in range(4):
        a("ds_read_b64 v[%d:%d], v9 offset:%d" % (48+2*rq, 49+2*rq, 48 - 16*rq))
    a("s_lshr_b32 s54, s47, 1")
    a("s_cmp_eq_u32 s54, 0")
    a("s_cselect_b32 s54, s44, s45")
    a("s_lshl_b32 s55, s54, 16")
    a("s_and_b32 s54, s54, 0xffff0000")
    a("s_and_b32 s56, s47, 1")
    a("s_cmp_eq_u32 s56, 0")
    a("s_cselect_b32 s54, s55, s54")
    a("s_waitcnt lgkmcnt(0)")
    for rq in range(4):
        r = 96+4*rq
        unpack(a, 59, 58, 48+2*rq)
        unpack(a, 57, 56, 49+2*rq)
        for e in range(4):
            a("v_mul_f32 v%d, s54, v%d" % (56+e, 56+e))
        rnd2(a, 60, 56, 57); rnd2(a, 60, 58, 59)
        rnd2(a, 60, r, r+1); rnd2(a, 60, r+2, r+3)
        for e in range(4):
            a("v_add_f32 v%d, v%d, v%d" % (r+e, r+e, 56+e))
        a("v_cvt_pk_bf16_f32 v%d, v%d, v%d" % (r, r, r+1))
        a("v_cvt_pk_bf16_f32 v%d, v%d, v%d" % (r+1, r+2, r+3))
    a("s_barrier")
    a("v_lshlrev_b32 v11, 5, v7")
    a("v_lshl_add_u32 v11, v4, 2, v11")
    a("v_lshlrev_b32 v11, 3, v11")
    a("v_lshl_add_u32 v11, v7, 3, v11")
    a("s_lshl_b32 s56, s47, 1")
    a("v_add_u32 v11, s56, v11")
    for rq in range(4):
        r = 96+4*rq
        a("ds_write_b16 v11, v%d offset:%d" % (r, 64*rq))
        a("ds_write_b16_d16_hi v11, v%d offset:%d" % (r, 64*rq+8))
        a("ds_write_b16 v11, v%d offset:%d" % (r+1, 64*rq+16))
        a("ds_write_b16_d16_hi v11, v%d offset:%d" % (r+1, 64*rq+24))
    a("s_waitcnt lgkmcnt(0)")
    a("s_barrier")
    a("v_lshlrev_b32 v12, 3, v0")
    a("v_lshrrev_b32 v14, 5, v0")
    a("v_lshl_add_u32 v14, v14, 3, v12")
    for i in range(4):
        a("ds_read_b64 v[%d:%d], v14 offset:%d" % (16+2*i, 17+2*i, (4096+128)*i))
    a("s_lshl_b32 s3, s2, 14")
    a("v_add_u32 v13, s3, v12")
    for i in range(4):
        a("s_waitcnt lgkmcnt(%d)" % (3-i))
        a("buffer_store_dwordx2 v[%d:%d], v13, s[28:31], 0 offen" % (16+2*i, 17+2*i))
        a("v_add_u32 v13, 0x%x, v13" % 4096)
    if 'stamp' in EXP: a("s_waitcnt vmcnt(0)")
    stamp(a, 6)
    stamp_out(a, 7, 46)
    SB0[0] = 70
    a("s_branch %s" % end)
    a.label(ltr)
    load_ptr(a, 6, B_WIN); load_ptr(a, 8, B_WOUT)
    a("s_waitcnt lgkmcnt(0)")
    srd_from(a, 16, 6, 0, D*F*2)
    srd_from(a, 20, 4, WS['WINT'], D*F*2)
    srd_from(a, 24, 8, 0, D*FH*2)
    srd_from(a, 28, 4, WS['WOUTT'], D*FH*2)
    a("v_lshrrev_b32 v20, 8, v0")
    a("v_and_b32 v21, 255, v0")
    a("v_lshrrev_b32 v1, 3, v21")
    a("v_and_b32 v2, 7, v21")
    a("v_mul_u32_u24 v4, 640, v2")
    a("v_lshl_add_u32 v4, v1, 1, v4")
    a("v_mul_u32_u24 v22, 5120, v20")
    a("v_add_u32 v4, v4, v22")
    a("v_lshrrev_b32 v5, 2, v21")
    a("v_and_b32 v6, 3, v21")
    a("v_mul_u32_u24 v7, 80, v5")
    a("v_lshl_add_u32 v7, v6, 4, v7")
    a("v_add_u32 v7, v7, v22")
    a("s_sub_u32 s3, s2, %d" % (D//NCH))
    a("s_lshl_b32 s3, s3, 1")
    a("v_add_u32 v23, s3, v20")
    NT = NT_IN + NT_OUT
    NIT = (NT + 2*NTRW - 1)//(2*NTRW)
    for it in range(NIT):
        m_in = 40 + 4*it; m_out = 42 + 4*it
        a("v_cmp_gt_u32 vcc, %d, v23" % NT_IN)
        a("s_mov_b64 s[80:81], vcc")
        a("v_cmp_gt_u32 vcc, %d, v23" % NT)
        a("s_mov_b64 s[82:83], vcc")
        a("v_subrev_u32 v24, %d, v23" % NT_IN)
        a("v_cndmask_b32 v24, v24, v23, s[80:81]")
        a("v_mul_u32_u24 v25, 0x%x, v24" % ((1 << 20)//27 + 1)); a("v_lshrrev_b32 v25, 20, v25")
        a("v_mul_u32_u24 v26, 0x%x, v24" % ((1 << 20)//10 + 1)); a("v_lshrrev_b32 v26, 20, v26")
        a("v_cndmask_b32 v25, v26, v25, s[80:81]")
        a("v_mov_b32 v26, 10"); a("v_cndmask_b32 v26, v26, 27, s[80:81]")
        a("v_mul_u32_u24 v26, v26, v25"); a("v_sub_u32 v26, v24, v26")
        a("v_mov_b32 v27, %d" % (D*2)); a("v_mov_b32 v28, %d" % (F*2)); a("v_cndmask_b32 v27, v27, v28, s[80:81]")
        a("v_mov_b32 v28, %d" % (FH*2)); a("v_mov_b32 v29, %d" % (D*2)); a("v_cndmask_b32 v28, v28, v29, s[80:81]")
        a("v_lshl_add_u32 v29, v25, 5, v1")
        a("v_mul_lo_u32 v29, v29, v27")
        a("v_lshl_add_u32 v29, v2, 4, v29")
        a("v_lshl_add_u32 v29, v26, 7, v29")
        vo = 32 + it
        a("v_lshl_add_u32 v%d, v26, 6, v5" % vo)
        a("v_mul_lo_u32 v%d, v%d, v28" % (vo, vo))
        a("v_lshl_add_u32 v%d, v6, 4, v%d" % (vo, vo))
        a("v_lshl_add_u32 v%d, v25, 6, v%d" % (vo, vo))
        a("s_and_b64 s[%d:%d], s[80:81], s[82:83]" % (m_in, m_in+1))
        a("s_andn2_b64 s[%d:%d], s[82:83], s[80:81]" % (m_out, m_out+1))
        vd = 40 + 4*it
        a("s_mov_b64 exec, s[%d:%d]" % (m_in, m_in+1))
        a("buffer_load_dwordx4 v[%d:%d], v29, s[16:19], 0 offen" % (vd, vd+3))
        a("s_mov_b64 exec, s[%d:%d]" % (m_out, m_out+1))
        a("buffer_load_dwordx4 v[%d:%d], v29, s[24:27], 0 offen" % (vd, vd+3))
        a("s_mov_b64 exec, -1")
        a("v_add_u32 v23, %d, v23" % (2*NTRW))
    a("s_waitcnt vmcnt(0)")
    for it in range(NIT):
        vd = 40 + 4*it
        for e in range(8):
            if e % 2 == 0: a("ds_write_b16 v4, v%d offset:%d" % (vd+e//2, e*80 + it*10240))
            else: a("ds_write_b16_d16_hi v4, v%d offset:%d" % (vd+e//2, e*80 + it*10240))
    a("s_waitcnt lgkmcnt(0)")
    a("s_barrier")
    for it in range(NIT):
        vd = 40 + 4*it
        a("ds_read_b128 v[%d:%d], v7 offset:%d" % (vd, vd+3, it*10240))
    for it in range(NIT):
        vd = 40 + 4*it; vo = 32 + it
        m_in = 40 + 4*it; m_out = 42 + 4*it
        a("s_waitcnt lgkmcnt(%d)" % (NIT-1-it))
        a("s_mov_b64 exec, s[%d:%d]" % (m_in, m_in+1))
        a("buffer_store_dwordx4 v[%d:%d], v%d, s[20:23], 0 offen" % (vd, vd+3, vo))
        a("s_mov_b64 exec, s[%d:%d]" % (m_out, m_out+1))
        a("buffer_store_dwordx4 v[%d:%d], v%d, s[28:31], 0 offen" % (vd, vd+3, vo))
        a("s_mov_b64 exec, -1")
    a.label(end)
    end_kernel(a, name, 176, 102)

def main():
    a = Asm()
    launches = []
    gen_prepa(a, "prepa_kernel"); launches.append(("prepa_kernel", S//PR_ROWS, 320, 0))
    gen_conv(a, "conv_kernel"); launches.append(("conv_kernel", D//NCH + NTRW, 512, NCH*CHSZ))
    gen_e(a, "e1_kernel", (('in', A_Q), 'X1'))
    gen_e(a, "e2_kernel", (('ws', 'X2'), 'X3'))
    l1 = gen_gemm(a, "g1_kernel", ('ws', 'WINT', D*2, F*D*2), ('ws', 'XN', D*2, S*D*2), D, 192, 128, F//192, S//128, epi_g1, {'pre': pre_g1}, NS=4, WPn=4, WQn=2, xcd=(2,4))
    gen_ln2(a, "ln2_kernel")
    l2 = gen_gemm(a, "g2_kernel", ('ws', 'Z2T', S*2, FH*S*2), ('in', B_WSP, S*2, S*S*2), S, 96, 128, FH//96, S//128, epi_g2, {'in_slots': [B_BSP], 'pblocked': True, 'pre': pre_g2}, NS=5, xcd=(2,4))
    l3 = gen_gemm(a, "g3a_kernel", ('ws', 'WOUTT', FH*2, D*FH*2+4096), ('ws', 'H', FH*2, S*FH*2+4096), FH, 64, 128, D//64, S//128, epi_g3, {'xin': 'X1', 'out': 'X2', 'pre': pre_g3}, NS=5, xcd=(2,4))
    gen_gemm(a, "g3b_kernel", ('ws', 'WOUTT', FH*2, D*FH*2+4096), ('ws', 'H', FH*2, S*FH*2+4096), FH, 64, 128, D//64, S//128, epi_g3, {'xin': 'X3', 'out': 'dout', 'in_slots': [D_OUT], 'pre': pre_g3}, NS=5, xcd=(2,4))
    for lay in range(2):
        launches.append(("e%d_kernel" % (lay+1), S//16, 1024, 0))
        launches.append(("g1_kernel",) + l1)
        launches.append(("ln2_kernel", S//LN2_ROWS, 1024, 256))
        launches.append(("g2_kernel",) + l2)
        launches.append(("g3a_kernel" if lay == 0 else "g3b_kernel",) + l3)
    nl = int(sys.argv[2]) if len(sys.argv) > 2 else len(launches)
    out = []
    for (k, g, b, l) in launches[:nl]:
        out.append("; @launch kernel=%s grid=(%d,1,1) block=(%d,1,1) lds=%d" % (k, g, b, l))
    out.append('.amdgcn_target "amdgcn-amd-amdhsa--gfx950"')
    out.append(".text")
    out += a.lines
    out.append('.section .rodata,"a"')
    for (k, nv, ns) in a.kernels:
        nv8 = (nv + 7)//8*8
        out.append(".p2align 6")
        out.append(".amdhsa_kernel %s" % k)
        out.append("  .amdhsa_next_free_vgpr %d" % nv8)
        out.append("  .amdhsa_next_free_sgpr %d" % ns)
        out.append("  .amdhsa_accum_offset %d" % nv8)
        out.append("  .amdhsa_group_segment_fixed_size 0")
        out.append("  .amdhsa_kernarg_size 112")
        out.append("  .amdhsa_user_sgpr_count 2")
        out.append("  .amdhsa_user_sgpr_kernarg_segment_ptr 1")
        out.append("  .amdhsa_system_sgpr_workgroup_id_x 1")
        out.append(".end_amdhsa_kernel")
    open(sys.argv[1], "w").write("\n".join(out) + "\n")
    import json
    json.dump(WS, open(sys.argv[1] + ".ws.json", "w"))

if __name__ == "__main__":
    main()
```

```python
import math, sys, os
EXP = os.environ.get('EXP', '')

S = 2048; D = 640; F = 1728; FH = 864
NAME = "interleave_layers__ssm_conv_h3__mixer_gmlp__prompt"

A_Q, A_K, A_V, A_SHK, A_SSMK, A_SSMD, B_X, B_WIN, B_WSP, B_BSP, B_WOUT, D_OUT, D_DBG, D_WS = [8*i for i in range(14)]

def al(x, a=4096): return (x + a - 1)//a*a
WS = {}
_off = 0
def ws_alloc(name, nbytes):
    global _off
    WS[name] = _off
    _off = al(_off + nbytes + 4096)
ws_alloc('Y', S*D*2)
ws_alloc('WINT', F*D*2)
ws_alloc('WOUTT', D*FH*2)
ws_alloc('X1', S*D*2)
ws_alloc('XN', S*D*2)
ws_alloc('Z', S*F*2)
ws_alloc('Z2T', FH*S*2)
ws_alloc('H', S*FH*2)
ws_alloc('X2', S*D*2)
ws_alloc('X3', S*D*2)
ws_alloc('KVR', D*64*80)
WS_TOTAL = _off

class Asm:
    def __init__(self):
        self.lines = []
        self.kernels = []
        self.lab = 0
    def __call__(self, s):
        self.lines.append("    " + s)
    def label(self, l):
        self.lines.append(l + ":")
    def newlabel(self, p="L"):
        self.lab += 1
        return "%s_%d" % (p, self.lab)
    def raw(self, s):
        self.lines.append(s)

def begin_kernel(a, name):
    a.raw(".p2align 8")
    a.raw(".type %s,@function" % name)
    a.raw("%s:" % name)

def end_kernel(a, name, nv, ns=102):
    a("s_endpgm")
    a.kernels.append((name, nv, ns))

def load_ptr(a, sdst, slot):
    a("s_load_dwordx2 s[%d:%d], s[0:1], %d" % (sdst, sdst+1, slot))

def srd_from(a, sd, sptr, off, nbytes):
    if off:
        a("s_add_u32 s%d, s%d, 0x%x" % (sd, sptr, off))
        a("s_addc_u32 s%d, s%d, 0" % (sd+1, sptr+1))
    else:
        a("s_mov_b32 s%d, s%d" % (sd, sptr))
        a("s_mov_b32 s%d, s%d" % (sd+1, sptr+1))
    a("s_mov_b32 s%d, 0x%x" % (sd+2, nbytes))
    a("s_mov_b32 s%d, 0x00020000" % (sd+3))

def wave_sum(a, vsrc, vt, s0):
    a("s_nop 1")
    a("v_add_f32_dpp v%d, v%d, v%d quad_perm:[1,0,3,2] row_mask:0xf bank_mask:0xf" % (vt, vsrc, vsrc))
    a("s_nop 1")
    a("v_add_f32_dpp v%d, v%d, v%d quad_perm:[2,3,0,1] row_mask:0xf bank_mask:0xf" % (vt, vt, vt))
    a("s_nop 1")
    a("v_add_f32_dpp v%d, v%d, v%d row_half_mirror row_mask:0xf bank_mask:0xf" % (vt, vt, vt))
    a("s_nop 1")
    a("v_add_f32_dpp v%d, v%d, v%d row_mirror row_mask:0xf bank_mask:0xf" % (vt, vt, vt))
    a("s_nop 1")
    for i in range(4):
        a("v_readlane_b32 s%d, v%d, %d" % (s0+i, vt, 16*i))
    a("s_nop 1")
    a("v_mov_b32 v%d, s%d" % (vt, s0))
    for i in range(1, 4):
        a("v_add_f32 v%d, s%d, v%d" % (vt, s0+i, vt))

def rnd2(a, vpk, va, vb):
    a("v_cvt_pk_bf16_f32 v%d, v%d, v%d" % (vpk, va, vb))
    a("v_lshlrev_b32 v%d, 16, v%d" % (va, vpk))
    a("v_and_b32 v%d, 0xffff0000, v%d" % (vb, vpk))

def unpack(a, vlo, vhi, vsrc):
    a("v_lshlrev_b32 v%d, 16, v%d" % (vlo, vsrc))
    a("v_and_b32 v%d, 0xffff0000, v%d" % (vhi, vsrc))

def layernorm_regs(a, xs, n, vt, vm, vr, vpk, s0, valid=None, nvalid_tail=None):
    ln_stats(a, xs, n, vt, vm, vr, vpk, s0, valid, nvalid_tail)
    for i in range(0, len(xs), 2):
        x0, x1 = xs[i], xs[i+1]
        a("v_sub_f32 v%d, v%d, v%d" % (x0, x0, vm))
        a("v_sub_f32 v%d, v%d, v%d" % (x1, x1, vm))
        rnd2(a, vpk, x0, x1)
        a("v_mul_f32 v%d, v%d, v%d" % (x0, x0, vr))
        a("v_mul_f32 v%d, v%d, v%d" % (x1, x1, vr))
        rnd2(a, vpk, x0, x1)


def wave_sum2(a, va, vb, s0):
    for pat in ("quad_perm:[1,0,3,2]", "quad_perm:[2,3,0,1]", "row_half_mirror", "row_mirror"):
        a("s_nop 0")
        a("v_add_f32_dpp v%d, v%d, v%d %s row_mask:0xf bank_mask:0xf" % (va, va, va, pat))
        a("v_add_f32_dpp v%d, v%d, v%d %s row_mask:0xf bank_mask:0xf" % (vb, vb, vb, pat))
    a("s_nop 0")
    for i in range(4):
        a("v_readlane_b32 s%d, v%d, %d" % (s0+i, va, 16*i))
    for i in range(4):
        a("v_readlane_b32 s%d, v%d, %d" % (s0+4+i, vb, 16*i))
    a("v_mov_b32 v%d, s%d" % (va, s0))
    a("v_mov_b32 v%d, s%d" % (vb, s0+4))
    for i in range(1, 4):
        a("v_add_f32 v%d, s%d, v%d" % (va, s0+i, va))
        a("v_add_f32 v%d, s%d, v%d" % (vb, s0+4+i, vb))

def ln_stats(a, xs, n, vt, vm, vr, vpk, s0, valid=None, nvalid_tail=None):
    a("v_add_f32 v%d, v%d, v%d" % (vm, xs[0], xs[1]))
    a("v_mul_f32 v%d, v%d, v%d" % (vr, xs[0], xs[0]))
    a("v_fmac_f32 v%d, v%d, v%d" % (vr, xs[1], xs[1]))
    for x in xs[2:]:
        a("v_add_f32 v%d, v%d, v%d" % (vm, vm, x))
        a("v_fmac_f32 v%d, v%d, v%d" % (vr, x, x))
    a("s_nop 0")
    wave_sum2(a, vm, vr, s0)
    a("v_mul_f32 v%d, 0x%08x, v%d" % (vm, f2u(1.0/n), vm))
    a("v_mul_f32 v%d, 0x%08x, v%d" % (vr, f2u(1.0/n), vr))
    a("v_fma_f32 v%d, -v%d, v%d, v%d" % (vr, vm, vm, vr))
    a("v_max_f32 v%d, 0, v%d" % (vr, vr))
    rnd2(a, vpk, vm, vr)
    a("v_add_f32 v%d, 0x%08x, v%d" % (vr, f2u(1e-5), vr))
    a("v_cvt_pk_bf16_f32 v%d, v%d, v%d" % (vpk, vr, vr))
    a("v_lshlrev_b32 v%d, 16, v%d" % (vr, vpk))
    a("v_sqrt_f32 v%d, v%d" % (vr, vr))
    a("s_nop 0")
    a("v_cvt_pk_bf16_f32 v%d, v%d, v%d" % (vpk, vr, vr))
    a("v_lshlrev_b32 v%d, 16, v%d" % (vr, vpk))
    a("v_rcp_f32 v%d, v%d" % (vr, vr))
    a("s_nop 0")

import struct
def f2u(f):
    return struct.unpack("<I", struct.pack("<f", f))[0]

def gen_e(a, name, src):
    srcspec, dstname = src
    begin_kernel(a, name)
    end = a.newlabel("Lend")
    a("s_cmp_ge_u32 s2, %d" % (S//16))
    a("s_cbranch_scc1 %s" % end)
    load_ptr(a, 4, D_WS)
    if srcspec[0] == 'in':
        load_ptr(a, 6, srcspec[1])
    a("s_waitcnt lgkmcnt(0)")
    if srcspec[0] == 'in':
        srd_from(a, 8, 6, 0, S*D*2)
    else:
        srd_from(a, 8, 4, WS[srcspec[1]], S*D*2)
    srd_from(a, 12, 4, WS['Y'], S*D*2)
    srd_from(a, 16, 4, WS[dstname], S*D*2)
    srd_from(a, 20, 4, WS['XN'], S*D*2)
    a("v_lshrrev_b32 v1, 6, v0")
    a("s_lshl_b32 s3, s2, 4")
    a("v_add_u32 v1, s3, v1")
    a("v_and_b32 v2, 63, v0")
    a("v_mul_u32_u24 v1, %d, v1" % (D*2))
    a("v_lshl_add_u32 v1, v2, 3, v1")
    a("v_cmp_gt_u32 vcc, 32, v2")
    a("v_cndmask_b32 v58, 0, 1.0, vcc")
    a("s_mov_b64 s[30:31], vcc")
    for r in (8, 9, 14, 15): a("v_mov_b32 v%d, 0" % r)
    a("v_lshrrev_b32 v3, 3, v0")
    a("v_and_b32 v59, 7, v0")
    a("v_lshlrev_b32 v60, 14, v3")
    a("v_lshl_add_u32 v60, v59, 4, v60")
    a("s_lshl_b32 s3, s2, 7")
    a("buffer_load_dwordx4 v[16:19], v60, s[12:15], s3 offen")
    a("v_cmp_gt_u32 vcc, 256, v0")
    a("s_and_saveexec_b64 s[28:29], vcc")
    a("v_add_u32 v60, 0x%x, v60" % (128*16384))
    a("buffer_load_dwordx4 v[44:47], v60, s[12:15], s3 offen")
    a("s_mov_b64 exec, -1")
    a("buffer_load_dwordx2 v[4:5], v1, s[8:11], 0 offen")
    a("buffer_load_dwordx2 v[6:7], v1, s[8:11], 0 offen offset:512")
    a("s_mov_b64 exec, s[30:31]")
    a("buffer_load_dwordx2 v[8:9], v1, s[8:11], 0 offen offset:1024")
    a("s_mov_b64 exec, -1")
    a("v_mul_u32_u24 v3, 144, v3")
    a("v_lshl_add_u32 v3, v59, 4, v3")
    a("s_waitcnt vmcnt(3)")
    a("ds_write_b128 v3, v[16:19]")
    a("s_mov_b64 exec, s[28:29]")
    a("v_cmp_gt_u32 vcc, 256, v0")
    a("s_and_saveexec_b64 s[28:29], vcc")
    a("ds_write_b128 v3, v[44:47] offset:%d" % (128*144))
    a("s_mov_b64 exec, -1")
    a("s_waitcnt lgkmcnt(0)")
    a("s_barrier")
    a("v_lshrrev_b32 v3, 6, v0")
    a("v_lshlrev_b32 v3, 3, v3")
    a("v_mul_u32_u24 v59, 144, v2")
    a("v_add_u32 v3, v3, v59")
    a("ds_read_b64 v[10:11], v3")
    a("ds_read_b64 v[12:13], v3 offset:%d" % (64*144))
    a("s_mov_b64 exec, s[30:31]")
    a("ds_read_b64 v[14:15], v3 offset:%d" % (128*144))
    a("s_mov_b64 exec, -1")
    X = list(range(20, 32)); L = list(range(32, 44)); Yv = list(range(44, 56))
    a("s_waitcnt vmcnt(0) lgkmcnt(0)")
    for i in range(6):
        unpack(a, X[2*i], X[2*i+1], 4+i)
        a("v_mov_b32 v%d, v%d" % (L[2*i], X[2*i]))
        a("v_mov_b32 v%d, v%d" % (L[2*i+1], X[2*i+1]))
    layernorm_regs(a, L, D, 61, 62, 63, 57, 32, valid=58, nvalid_tail=4)
    for i in range(6):
        unpack(a, Yv[2*i], Yv[2*i+1], 10+i)
    for i in range(0, 12, 2):
        a("v_mul_f32 v%d, v%d, v%d" % (L[i], L[i], Yv[i]))
        a("v_mul_f32 v%d, v%d, v%d" % (L[i+1], L[i+1], Yv[i+1]))
        rnd2(a, 57, L[i], L[i+1])
        a("v_add_f32 v%d, v%d, v%d" % (X[i], X[i], L[i]))
        a("v_add_f32 v%d, v%d, v%d" % (X[i+1], X[i+1], L[i+1]))
        rnd2(a, 4+i//2, X[i], X[i+1])
    a("buffer_store_dwordx2 v[4:5], v1, s[16:19], 0 offen")
    a("buffer_store_dwordx2 v[6:7], v1, s[16:19], 0 offen offset:512")
    a("s_mov_b64 exec, s[30:31]")
    a("buffer_store_dwordx2 v[8:9], v1, s[16:19], 0 offen offset:1024")
    a("s_mov_b64 exec, -1")
    layernorm_regs(a, X, D, 61, 62, 63, 57, 32, valid=58, nvalid_tail=4)
    for i in range(6):
        a("v_cvt_pk_bf16_f32 v%d, v%d, v%d" % (10+i, X[2*i], X[2*i+1]))
    a("buffer_store_dwordx2 v[10:11], v1, s[20:23], 0 offen")
    a("buffer_store_dwordx2 v[12:13], v1, s[20:23], 0 offen offset:512")
    a("s_mov_b64 exec, s[30:31]")
    a("buffer_store_dwordx2 v[14:15], v1, s[20:23], 0 offen offset:1024")
    a.label(end)
    end_kernel(a, name, 64, 40)

LN2_ROWS = 16
LN2_PITCH = 48
def gen_ln2(a, name):
    begin_kernel(a, name)
    end = a.newlabel("Lend")
    a("s_cmp_ge_u32 s2, %d" % (S//LN2_ROWS))
    a("s_cbranch_scc1 %s" % end)
    load_ptr(a, 4, D_WS)
    a("s_waitcnt lgkmcnt(0)")
    srd_from(a, 8, 4, WS['Z'], S*F*2)
    srd_from(a, 12, 4, WS['Z2T'], FH*S*2)
    a("v_and_b32 v2, 63, v0")
    a("v_lshrrev_b32 v3, 6, v0")
    a("v_cmp_gt_u32 vcc, 54, v2")
    a("v_cndmask_b32 v4, 0, 1.0, vcc")
    a("s_mov_b64 s[30:31], vcc")
    a("s_mul_i32 s3, s2, %d" % (16*F*2))
    a("s_add_u32 s3, s3, %d" % (FH*2))
    a("v_mul_u32_u24 v7, %d, v3" % (F*2))
    a("v_lshl_add_u32 v7, v2, 4, v7")
    X = list(range(24, 40))
    for i in range(8):
        a("v_mov_b32 v%d, 0" % (12+i))
    a("s_mov_b64 exec, s[30:31]")
    a("buffer_load_dwordx4 v[12:15], v7, s[8:11], s3 offen")
    a("buffer_load_dwordx4 v[16:19], v7, s[8:11], s3 offen offset:%d" % (54*16))
    a("s_mov_b64 exec, -1")
    a("v_lshlrev_b32 v8, 1, v0")
    PB = 48
    for r in range(16):
        if r and r % 1 == 0 and (r*F*2) > 4095 and r % 1 == 0:
            pass
        a("s_add_u32 s24, s3, %d" % (r*F*2))
        a("buffer_load_ushort v%d, v8, s[8:11], s24 offen" % (PB+r))
    a("s_waitcnt vmcnt(16)")
    for i in range(8):
        unpack(a, X[2*i], X[2*i+1], 12+i)
    ln_stats(a, X, FH, 40, 41, 42, 43, 32, valid=4)
    a("v_lshlrev_b32 v9, 3, v3")
    a("v_mov_b32 v44, v41"); a("v_mov_b32 v45, v42")
    a("ds_write_b64 v9, v[44:45]")
    a("s_waitcnt lgkmcnt(0)")
    a("s_barrier")
    a("v_cmp_gt_u32 vcc, %d, v0" % FH)
    a("s_and_saveexec_b64 s[28:29], vcc")
    a("s_cbranch_execz %s" % end)
    a("v_mov_b32 v9, 0")
    for i in range(8):
        a("ds_read_b128 v[%d:%d], v9 offset:%d" % (64+4*i, 67+4*i, 16*i))
    a("s_waitcnt vmcnt(0) lgkmcnt(0)")
    for r in range(0, 16, 2):
        x0, x1 = PB+r, PB+r+1
        a("v_lshlrev_b32 v%d, 16, v%d" % (x0, x0))
        a("v_lshlrev_b32 v%d, 16, v%d" % (x1, x1))
        a("v_sub_f32 v%d, v%d, v%d" % (x0, x0, 64+2*r))
        a("v_sub_f32 v%d, v%d, v%d" % (x1, x1, 64+2*r+2))
        rnd2(a, 43, x0, x1)
        a("v_mul_f32 v%d, v%d, v%d" % (x0, x0, 64+2*r+1))
        a("v_mul_f32 v%d, v%d, v%d" % (x1, x1, 64+2*r+3))
        a("v_cvt_pk_bf16_f32 v%d, v%d, v%d" % (24+r//2, x0, x1))
    a("v_lshlrev_b32 v12, 5, v0")
    a("s_mul_i32 s3, s2, %d" % (FH*32))
    a("buffer_store_dwordx4 v[24:27], v12, s[12:15], s3 offen")
    a("buffer_store_dwordx4 v[28:31], v12, s[12:15], s3 offen offset:16")
    a.label(end)
    end_kernel(a, name, 96, 40)

SB0 = [70]
def stamp(a, i):
    if 'stamp' in EXP:
        a("s_memtime s[%d:%d]" % (SB0[0]+2*i, SB0[0]+1+2*i))
        a("s_waitcnt lgkmcnt(0)")
def stamp_out(a, n, swave=44):
    if 'stamp' not in EXP: return
    a("s_load_dwordx2 s[64:65], s[0:1], %d" % D_DBG)
    a("s_waitcnt lgkmcnt(0)")
    a("s_mov_b32 s66, 256"); a("s_mov_b32 s67, 0x20000")
    l = a.newlabel("Lst")
    a("s_cmp_lg_u32 s2, 8")
    a("s_cbranch_scc1 %s" % l)
    a("s_cmp_lg_u32 s%d, 0" % swave)
    a("s_cbranch_scc1 %s" % l)
    a("v_mov_b32 v1, 0")
    for i in range(n):
        a("s_sub_u32 s63, s%d, s%d" % (SB0[0]+2*i, SB0[0]))
        a("v_mov_b32 v2, s63")
        a("buffer_store_dword v2, v1, s[64:67], 0 offen offset:%d" % (4*i))
    a.label(l)
def gen_gemm(a, name, Pd, Qd, K, TP, TQ, nP, nQ, epi, epi_args, NS=4, WPn=2, WQn=2, xcd=None, nL=4):
    nW = WPn*WQn
    begin_kernel(a, name)
    end = a.newlabel("Lend"); lload = a.newlabel("Lload")
    gp, gq = xcd
    assert gp*gq == 8 and nQ % gq == 0
    ppg = (nP + gp - 1)//gp
    qpg = nQ//gq
    nWG = 8*ppg*qpg
    a("s_cmp_ge_u32 s2, %d" % nWG)
    a("s_cbranch_scc1 %s" % end)
    load_ptr(a, 4, D_WS)
    sl = 6
    ptrs = {}
    for d in (Pd, Qd):
        if d[0] == 'in':
            load_ptr(a, sl, d[1]); ptrs[d[1]] = sl; sl += 2
    for slot in epi_args.get('in_slots', []):
        load_ptr(a, sl, slot); ptrs[slot] = sl; sl += 2
    assert sl <= 16
    a("s_and_b32 s40, s2, 7")
    a("s_lshr_b32 s41, s2, 3")
    a("s_and_b32 s42, s40, %d" % (gp-1))
    a("s_lshr_b32 s43, s40, %d" % int(math.log2(gp)))
    a("s_mov_b32 s45, 0x%x" % ((1 << 32)//ppg + 1))
    a("s_mul_hi_u32 s46, s41, s45")
    a("s_mul_i32 s45, s46, %d" % ppg)
    a("s_sub_u32 s45, s41, s45")
    a("s_mul_i32 s42, s42, %d" % ppg)
    a("s_add_u32 s42, s42, s45")
    a("s_mul_i32 s43, s43, %d" % qpg)
    a("s_add_u32 s43, s43, s46")
    a("s_cmp_ge_u32 s42, %d" % nP)
    a("s_cbranch_scc1 %s" % end)
    a("s_mov_b32 s39, s42")
    a("s_mul_i32 s42, s42, %d" % TP)
    if epi_args.get('short_from') is not None:
        a("s_sub_u32 s38, s39, %d" % epi_args['short_from'])
        a("s_max_i32 s38, s38, 0")
        a("s_lshl_b32 s38, s38, 4")
        a("s_sub_u32 s42, s42, s38")
    a("s_mul_i32 s43, s43, %d" % TQ)
    a("v_lshrrev_b32 v1, 6, v0")
    a("s_nop 0")
    a("v_readfirstlane_b32 s44, v1")
    a("v_and_b32 v2, 63, v0")
    a("v_lshrrev_b32 v5, 4, v2")
    a("s_waitcnt lgkmcnt(0)")
    stamp(a, 0)
    SB = (TP+TQ)*128
    nsteps = (K + 63)//64
    lastpartial = (K % 64) != 0
    npro = min(NS-1, nsteps)
    lpf = a.newlabel("Lpf")
    a("s_cmp_ge_u32 s44, %d" % (nW+nL))
    a("s_cbranch_scc1 %s" % lpf)
    a("s_cmp_ge_u32 s44, %d" % nW)
    a("s_cbranch_scc1 %s" % lload)
    wp, wq = TP//WPn, TQ//WQn
    nPf, nQf = wp//16, wq//16
    nH = (NS+1)//2
    VA = 8
    def vaddr(isQ, kk, half): return VA + ((2 if isQ else 0) + kk)*nH + half
    a("v_and_b32 v3, 15, v2")
    a("v_lshrrev_b32 v4, 1, v3")
    a("v_and_b32 v4, 7, v4")
    a("v_xor_b32 v4, v4, v5")
    a("v_lshlrev_b32 v4, 4, v4")
    a("v_lshl_add_u32 v4, v3, 7, v4")
    a("s_and_b32 s45, s44, %d" % (WPn-1))
    a("s_lshr_b32 s46, s44, %d" % int(math.log2(WPn)))
    a("s_mul_i32 s47, s45, %d" % (wp*128))
    a("s_mul_i32 s48, s46, %d" % (wq*128))
    a("s_add_u32 s48, s48, %d" % (TP*128))
    for isQ in (0, 1):
        for kk in range(2):
            for half in range(nH):
                v = vaddr(isQ, kk, half)
                a("v_add_u32 v%d, s%d, v4" % (v, 48 if isQ else 47))
                if kk: a("v_xor_b32 v%d, 64, v%d" % (v, v))
                if half: a("v_add_u32 v%d, %d, v%d" % (v, 2*SB*half, v))
    assert SB + max(nPf, nQf)*2048 < 65536
    VF = (VA + 4*nH + 3)//4*4
    def vPf(kk, i): return VF + (kk*nPf + i)*4
    def vQf(kk, j): return VF + (2*nPf + kk*nQf + j)*4
    VACC = VF + 2*(nPf+nQf)*4
    def acc(i, j): return VACC + (i*nQf + j)*4
    VEND = VACC + nPf*nQf*4
    for r in range(VACC, VEND):
        a("v_mov_b32 v%d, 0" % r)
    def reads(step, kk):
        if 'noread' in EXP: return
        st = step % NS
        half = st//2; soff = (st % 2)*SB
        order = [('P', 0)] + [('Q', j) for j in range(nQf)] + [('P', i) for i in range(1, nPf)]
        for (t, i) in order:
            if t == 'P':
                a("ds_read_b128 v[%d:%d], v%d offset:%d" % (vPf(kk,i), vPf(kk,i)+3, vaddr(0,kk,half), soff + i*2048))
            else:
                a("ds_read_b128 v[%d:%d], v%d offset:%d" % (vQf(kk,i), vQf(kk,i)+3, vaddr(1,kk,half), soff + i*2048))
    def mfmas(kk):
        if 'nomfma' in EXP: return
        for i in range(nPf):
            for j in range(nQf):
                a("v_mfma_f32_16x16x32_bf16 v[%d:%d], v[%d:%d], v[%d:%d], v[%d:%d]" % (
                    acc(i,j), acc(i,j)+3, vPf(kk,i), vPf(kk,i)+3, vQf(kk,j), vQf(kk,j)+3, acc(i,j), acc(i,j)+3))
    nfr = nPf + nQf
    VPRE = VEND
    ctx = dict(a=a, acc=acc, nPf=nPf, nQf=nQf, wp=wp, wq=wq, VF=VF, VACC=VACC, ptrs=ptrs, VPRE=VPRE)
    a("v_and_b32 v3, 15, v2")
    a("s_mul_i32 s47, s46, %d" % wq)
    a("s_add_u32 s47, s47, s43")
    a("v_add_u32 v3, s47, v3")
    a("v_lshrrev_b32 v4, 4, v2")
    a("v_lshlrev_b32 v4, 2, v4")
    a("s_mul_i32 s47, s45, %d" % wp)
    a("s_add_u32 s47, s47, s42")
    a("v_add_u32 v4, s47, v4")
    n0 = len(a.lines)
    VEND += epi_args['pre'](ctx, epi_args)
    deferred = a.lines[n0:]; del a.lines[n0:]
    stamp(a, 1)
    a("s_barrier")
    stamp(a, 2)
    reads(0, 0)
    for k in range(nsteps):
        has2 = not (lastpartial and k == nsteps-1)
        if has2:
            reads(k, 1)
            a("s_waitcnt lgkmcnt(%d)" % nfr)
        else:
            a("s_waitcnt lgkmcnt(0)")
        mfmas(0)
        if k+1 < nsteps:
            a("s_waitcnt lgkmcnt(0)")
            a("s_barrier")
            reads(k+1, 0)
            if k == 2: a.lines += deferred
            if has2: mfmas(1)
        elif has2:
            a("s_waitcnt lgkmcnt(0)")
            mfmas(1)
    a("s_nop 15")
    stamp(a, 3)
    if 'noepi' not in EXP: epi(ctx, epi_args)
    stamp(a, 4)
    if 'stamp' in EXP: a("s_waitcnt vmcnt(0)")
    stamp(a, 5)
    stamp_out(a, 6)
    a("s_branch %s" % end)
    a.label(lload)
    def mk(sd, d):
        if d[0] == 'in': srd_from(a, sd, ptrs[d[1]], 0, d[3])
        else: srd_from(a, sd, 4, WS[d[1]], d[3])
    mk(16, Pd); mk(20, Qd)
    assert TP % (8*nL) == 0 and TQ % (8*nL) == 0
    nI = (TP+TQ)//(8*nL)
    nIP = TP//(8*nL)
    VD = 8
    a("s_sub_u32 s44, s44, %d" % nW)
    a("v_lshrrev_b32 v3, 3, v2")
    a("v_and_b32 v4, 7, v2")
    a("s_lshl_b32 s45, s44, 3")
    a("s_lshl_b32 s46, s44, 2")
    for j in range(nI):
        isP = j < nIP
        jj = j if isP else j - nIP
        pitch = Pd[2] if isP else Qd[2]
        t0 = 42 if isP else 43
        a("v_add_u32 v6, s46, v5")
        if (4*jj*nL) % 8: a("v_add_u32 v6, %d, v6" % ((4*jj*nL) % 8))
        a("v_and_b32 v6, 7, v6")
        a("v_xor_b32 v6, v6, v4")
        a("v_add_u32 v7, s45, v3")
        a("v_add_u32 v7, s%d, v7" % t0)
        if jj: a("v_add_u32 v7, %d, v7" % (8*nL*jj))
        if isP and epi_args.get('pblocked'):
            a("v_lshlrev_b32 v7, 5, v7")
            a("v_lshrrev_b32 v%d, 1, v6" % (VD+j))
            a("v_mul_u32_u24 v%d, %d, v%d" % (VD+j, FH*32, VD+j))
            a("v_add_u32 v7, v7, v%d" % (VD+j))
            a("v_and_b32 v6, 1, v6")
            a("v_lshl_add_u32 v%d, v6, 4, v7" % (VD+j))
        else:
            a("s_mov_b32 s47, %d" % pitch)
            a("v_mul_lo_u32 v7, v7, s47")
            a("v_lshl_add_u32 v%d, v6, 4, v7" % (VD+j))
    a("s_lshl_b32 s49, s44, 10")
    def dma_stage(step):
        st = step % NS
        a("s_mov_b32 s50, %d" % (step*128))
        a("s_mov_b32 s51, %d" % (step*4*FH*32))
        for j in range(nI):
            if 'nodma' in EXP: break
            isP = j < nIP
            a("s_add_u32 m0, s49, %d" % (st*SB + j*1024*nL))
            a("s_nop 0")
            a("buffer_load_dwordx4 v%d, s[%d:%d], s%d offen lds" % (VD+j, 16 if isP else 20, 19 if isP else 23, 51 if (isP and epi_args.get('pblocked')) else 50))
    for st in range(npro): dma_stage(st)
    issued = npro
    assert nI*(NS-1) <= 63
    a("s_waitcnt vmcnt(%d)" % (nI*(issued-1)))
    a("s_barrier")
    for k in range(nsteps-1):
        a("s_waitcnt vmcnt(%d)" % (nI*(issued-1-(k+1))))
        a("s_barrier")
        if issued < nsteps:
            dma_stage(issued); issued += 1
    a("s_branch %s" % end)
    a.label(lpf)
    mk(16, Pd); mk(20, Qd)
    pf = []
    vr = 8
    blocked = epi_args.get('pblocked')
    for (isP, T, pitch, t0) in ((True, TP, Pd[2], 42), (False, TQ, Qd[2], 43)):
        if isP and blocked:
            nl = TP*32*4//128
            lpb = TP*32//128
            for i in range((nl+63)//64):
                a("v_add_u32 v3, %d, v2" % (64*i))
                a("v_min_u32 v3, %d, v3" % (nl-1))
                a("v_mul_u32_u24 v4, 0x%x, v3" % ((1 << 20)//lpb + 1))
                a("v_lshrrev_b32 v4, 20, v4")
                a("v_mul_u32_u24 v6, %d, v4" % lpb)
                a("v_sub_u32 v6, v3, v6")
                a("v_mul_u32_u24 v4, %d, v4" % (FH*32))
                a("v_lshl_add_u32 v4, v6, 7, v4")
                a("s_lshl_b32 s47, s42, 5")
                a("v_add_u32 v%d, s47, v4" % vr)
                pf.append((vr, 16, 51)); vr += 1
        else:
            for i in range((T+63)//64):
                a("v_add_u32 v3, %d, v2" % (64*i))
                a("v_min_u32 v3, %d, v3" % (T-1))
                a("v_add_u32 v3, s%d, v3" % t0)
                a("s_mov_b32 s47, %d" % pitch)
                a("v_mul_lo_u32 v%d, v3, s47" % vr)
                pf.append((vr, 16 if isP else 20, 50)); vr += 1
    def pf_stage(step):
        if 'pf' not in EXP: return
        a("s_mov_b32 s50, %d" % (step*128))
        a("s_mov_b32 s51, %d" % (step*4*FH*32))
        for (v, sd, sr) in pf:
            a("buffer_load_dword v1, v%d, s[%d:%d], s%d offen" % (v, sd, sd+3, sr))
    PD0 = epi_args.get('pd0', 6); PR = epi_args.get('pr', 3)
    nxt = npro
    for _ in range(PD0):
        if nxt < nsteps: pf_stage(nxt); nxt += 1
    a("s_barrier")
    for k in range(nsteps-1):
        for _ in range(PR):
            if nxt < nsteps:
                a("s_waitcnt vmcnt(40)")
                pf_stage(nxt); nxt += 1
        a("s_barrier")
    a.label(end)
    end_kernel(a, name, max(VEND, VD+nI), 96)
    return (nWG, 64*(nW+nL+(1 if 'pf' in EXP else 0)), NS*SB)

def pre_g1(c, args):
    a = c['a']
    srd_from(a, 24, 4, WS['Z'], S*F*2)
    a("v_mul_u32_u24 v5, %d, v3" % (F*2))
    a("v_lshl_add_u32 v5, v4, 1, v5")
    return 0

def epi_g1(c, args):
    a = c['a']
    T = c['VF']
    K0 = T; K1 = T+2; ONE = T+4
    a("v_mov_b32 v%d, 0x%08x" % (K0, f2u(-2.302208198))); a("v_mov_b32 v%d, 0x%08x" % (K0+1, f2u(-2.302208198)))
    a("v_mov_b32 v%d, 0x%08x" % (K1, f2u(-2.302208198*0.044715))); a("v_mov_b32 v%d, 0x%08x" % (K1+1, f2u(-2.302208198*0.044715)))
    a("v_mov_b32 v%d, 1.0" % ONE); a("v_mov_b32 v%d, 1.0" % (ONE+1))
    U = T+8
    for j in range(c['nQf']):
        for i in range(c['nPf']):
            r = c['acc'](i, j)
            rnd2(a, U+4, r, r+1); rnd2(a, U+4, r+2, r+3)
            for h in range(2):
                x = r+2*h; t = U+2*h
                a("v_pk_mul_f32 v[%d:%d], v[%d:%d], v[%d:%d]" % (t, t+1, x, x+1, x, x+1))
                a("v_pk_fma_f32 v[%d:%d], v[%d:%d], v[%d:%d], v[%d:%d]" % (t, t+1, t, t+1, K1, K1+1, K0, K0+1))
                a("v_pk_mul_f32 v[%d:%d], v[%d:%d], v[%d:%d]" % (t, t+1, t, t+1, x, x+1))
            for e in range(4):
                a("v_exp_f32 v%d, v%d" % (U+e, U+e))
            a("s_nop 0")
            for h in range(2):
                t = U+2*h
                a("v_pk_add_f32 v[%d:%d], v[%d:%d], v[%d:%d]" % (t, t+1, t, t+1, ONE, ONE+1))
            for e in range(4):
                a("v_rcp_f32 v%d, v%d" % (U+e, U+e))
            a("s_nop 0")
            for h in range(2):
                x = r+2*h; t = U+2*h
                a("v_pk_mul_f32 v[%d:%d], v[%d:%d], v[%d:%d]" % (x, x+1, x, x+1, t, t+1))
            a("v_cvt_pk_bf16_f32 v%d, v%d, v%d" % (r, r, r+1))
            a("v_cvt_pk_bf16_f32 v%d, v%d, v%d" % (r+1, r+2, r+3))
            a("buffer_store_dwordx2 v[%d:%d], v5, s[24:27], 0 offen offset:%d" % (r, r+1, i*32))
        a("v_add_u32 v5, %d, v5" % (16*F*2))

def pre_g2(c, args):
    a = c['a']
    srd_from(a, 24, 4, WS['Z'], S*F*2)
    srd_from(a, 28, 4, WS['H'], S*FH*2)
    srd_from(a, 32, c['ptrs'][B_BSP], 0, S*2)
    a("v_mul_u32_u24 v5, %d, v3" % (F*2))
    a("v_lshl_add_u32 v5, v4, 1, v5")
    a("v_mul_u32_u24 v6, %d, v3" % (FH*2))
    a("v_lshl_add_u32 v6, v4, 1, v6")
    a("v_lshlrev_b32 v7, 1, v3")
    T = c['VPRE']
    nPf, nQf = c['nPf'], c['nQf']
    for j in range(nQf):
        a("buffer_load_ushort v%d, v7, s[32:35], 0 offen offset:%d" % (T+j, 32*j))
    for j in range(nQf):
        for i in range(nPf):
            z = T+4+(j*nPf+i)*2
            a("buffer_load_dwordx2 v[%d:%d], v5, s[24:27], 0 offen offset:%d" % (z, z+1, i*32))
        a("v_add_u32 v5, %d, v5" % (16*F*2))
    return 4 + nPf*nQf*2

def epi_g2(c, args):
    a = c['a']
    T = c['VPRE']
    nPf, nQf = c['nPf'], c['nQf']
    a("s_waitcnt vmcnt(0)")
    U = c['VF']
    for j in range(nQf):
        a("v_lshlrev_b32 v%d, 16, v%d" % (T+j, T+j))
        for i in range(nPf):
            r = c['acc'](i, j); z = T+4+(j*nPf+i)*2
            rnd2(a, U, r, r+1); rnd2(a, U, r+2, r+3)
            for e in range(4):
                a("v_add_f32 v%d, v%d, v%d" % (r+e, r+e, T+j))
            rnd2(a, U, r, r+1); rnd2(a, U, r+2, r+3)
            unpack(a, U, U+1, z); unpack(a, U+2, U+3, z+1)
            for h in range(2):
                a("v_pk_mul_f32 v[%d:%d], v[%d:%d], v[%d:%d]" % (r+2*h, r+2*h+1, r+2*h, r+2*h+1, U+2*h, U+2*h+1))
            a("v_cvt_pk_bf16_f32 v%d, v%d, v%d" % (r, r, r+1))
            a("v_cvt_pk_bf16_f32 v%d, v%d, v%d" % (r+1, r+2, r+3))
            sk = None
            if args.get('short_from') is not None and i == nPf-1:
                sk = a.newlabel("Lsk")
                a("s_cmp_ge_u32 s39, %d" % args['short_from'])
                a("s_cbranch_scc1 %s" % sk)
            a("buffer_store_dwordx2 v[%d:%d], v6, s[28:31], 0 offen offset:%d" % (r, r+1, i*32))
            if sk: a.label(sk)
        a("v_add_u32 v6, %d, v6" % (16*FH*2))

def pre_g3(c, args):
    a = c['a']
    srd_from(a, 24, 4, WS[args['xin']], S*D*2)
    if args['out'] == 'dout':
        srd_from(a, 28, c['ptrs'][D_OUT], 0, S*D*2)
    else:
        srd_from(a, 28, 4, WS[args['out']], S*D*2)
    a("v_mul_u32_u24 v5, %d, v3" % (D*2))
    a("v_lshl_add_u32 v5, v4, 1, v5")
    a("v_mov_b32 v6, v5")
    T = c['VPRE']
    nPf, nQf = c['nPf'], c['nQf']
    for j in range(nQf):
        for i in range(nPf):
            z = T+(j*nPf+i)*2
            a("buffer_load_dwordx2 v[%d:%d], v5, s[24:27], 0 offen offset:%d" % (z, z+1, i*32))
        a("v_add_u32 v5, %d, v5" % (16*D*2))
    return nPf*nQf*2

def epi_g3(c, args):
    a = c['a']
    T = c['VPRE']
    nPf, nQf = c['nPf'], c['nQf']
    a("s_waitcnt vmcnt(0)")
    U = c['VF']
    for j in range(nQf):
        for i in range(nPf):
            r = c['acc'](i, j); z = T+(j*nPf+i)*2
            rnd2(a, U, r, r+1); rnd2(a, U, r+2, r+3)
            unpack(a, U, U+1, z); unpack(a, U+2, U+3, z+1)
            for h in range(2):
                a("v_pk_add_f32 v[%d:%d], v[%d:%d], v[%d:%d]" % (r+2*h, r+2*h+1, r+2*h, r+2*h+1, U+2*h, U+2*h+1))
            a("v_cvt_pk_bf16_f32 v%d, v%d, v%d" % (r, r, r+1))
            a("v_cvt_pk_bf16_f32 v%d, v%d, v%d" % (r+1, r+2, r+3))
            a("buffer_store_dwordx2 v[%d:%d], v6, s[28:31], 0 offen offset:%d" % (r, r+1, i*32))
        a("v_add_u32 v6, %d, v6" % (16*D*2))

NKV = S//32
NT_IN = (D//32)*(F//64)
NT_OUT = (FH//32)*(D//64)
COPYSZ = 4160
KVSZ = 96*80
KVIMG = 64*80
CHSZ = 8*COPYSZ + KVSZ
PR_ROWS = 16
def gen_prepa(a, name):
    begin_kernel(a, name)
    end = a.newlabel("Lend")
    a("s_cmp_ge_u32 s2, %d" % (S//PR_ROWS))
    a("s_cbranch_scc1 %s" % end)
    load_ptr(a, 4, D_WS)
    load_ptr(a, 6, A_K); load_ptr(a, 8, A_V); load_ptr(a, 10, A_SHK)
    a("s_waitcnt lgkmcnt(0)")
    srd_from(a, 16, 6, 0, S*D*2)
    srd_from(a, 20, 8, 0, S*D*2)
    srd_from(a, 24, 10, 0, D*8)
    srd_from(a, 28, 4, WS['KVR'], D*KVIMG)
    R = PR_ROWS
    a("s_mul_i32 s3, s2, %d" % (R*D*2))
    a("v_lshlrev_b32 v1, 2, v0")
    a("v_add_u32 v1, s3, v1")
    a("v_subrev_u32 v2, %d, v1" % (3*D*2))
    a("v_lshlrev_b32 v3, 4, v0")
    a("buffer_load_dwordx4 v[4:7], v3, s[24:27], 0 offen")
    KB = 16; VB = KB + R + 3
    def ld(dst, vbase, i, srd):
        if i % 3 == 0 and i:
            a("v_add_u32 v%d, %d, v%d" % (vbase, 3*1280, vbase))
        a("buffer_load_dword v%d, v%d, s[%d:%d], 0 offen offset:%d" % (dst, vbase, srd, srd+3, (i % 3)*1280))
    for i in range(R+3): ld(KB+i, 2, i, 16)
    for i in range(R): ld(VB+i, 1, i, 20)
    a("s_waitcnt vmcnt(0)")
    W = 60; K0 = 70; K1 = K0 + R + 3; O0 = K1 + R + 3; O1 = O0 + R
    for ch in range(2):
        for t in range(4):
            src = 4 + 2*ch + t//2
            if t % 2 == 0: a("v_lshlrev_b32 v%d, 16, v%d" % (W+4*ch+t, src))
            else: a("v_and_b32 v%d, 0xffff0000, v%d" % (W+4*ch+t, src))
    for i in range(R+3): unpack(a, K0+i, K1+i, KB+i)
    for r in range(R):
        for t in range(4):
            a("v_mul_f32 v8, v%d, v%d" % (W+3-t, K0+r+t))
            a("v_mul_f32 v9, v%d, v%d" % (W+4+3-t, K1+r+t))
            rnd2(a, 10, 8, 9)
            if t == 0:
                a("v_mov_b32 v%d, v8" % (O0+r)); a("v_mov_b32 v%d, v9" % (O1+r))
            else:
                a("v_add_f32 v%d, v%d, v8" % (O0+r, O0+r)); a("v_add_f32 v%d, v%d, v9" % (O1+r, O1+r))
                rnd2(a, 10, O0+r, O1+r)
        unpack(a, 8, 9, VB+r)
        a("v_mul_f32 v%d, v%d, v8" % (O0+r, O0+r)); a("v_mul_f32 v%d, v%d, v9" % (O1+r, O1+r))
    for ch in range(2):
        b = O0 if ch == 0 else O1
        for m in range(R//2):
            a("v_cvt_pk_bf16_f32 v%d, v%d, v%d" % (16+8*ch+m, b+R-1-2*m, b+R-2-2*m))
    a("s_lshr_b32 s3, s2, 1")
    a("s_mul_i32 s3, s3, %d" % (D*64))
    a("s_and_b32 s12, s2, 1")
    a("s_xor_b32 s12, s12, 1")
    a("s_lshl_b32 s12, s12, 5")
    a("s_add_u32 s3, s3, s12")
    a("v_lshlrev_b32 v3, 7, v0")
    a("v_add_u32 v3, s3, v3")
    for ch in range(2):
        for m in range(2):
            a("buffer_store_dwordx4 v[%d:%d], v3, s[28:31], 0 offen offset:%d" % (16+8*ch+4*m, 19+8*ch+4*m, 64*ch+16*m))
    a.label(end)
    end_kernel(a, name, O1+R, 40)

NCH = 4
NTRW = 96
def gen_conv(a, name):
    begin_kernel(a, name)
    end = a.newlabel("Lend"); ltr = a.newlabel("Ltr")
    a("s_cmp_ge_u32 s2, %d" % (D//NCH + NTRW))
    a("s_cbranch_scc1 %s" % end)
    load_ptr(a, 4, D_WS)
    a("s_cmp_ge_u32 s2, %d" % (D//NCH))
    a("s_cbranch_scc1 %s" % ltr)
    load_ptr(a, 12, A_SSMK); load_ptr(a, 14, A_SSMD)
    a("s_waitcnt lgkmcnt(0)")
    srd_from(a, 16, 4, WS['KVR'], D*KVIMG)
    a("s_lshl_b32 s3, s2, 3")
    a("s_add_u32 s14, s14, s3"); a("s_addc_u32 s15, s15, 0")
    a("s_load_dwordx2 s[44:45], s[14:15], 0")
    srd_from(a, 24, 12, 0, D*S*2)
    srd_from(a, 28, 4, WS['Y'], S*D*2)
    a("v_lshrrev_b32 v1, 6, v0")
    a("s_nop 0")
    a("v_readfirstlane_b32 s46, v1")
    a("v_and_b32 v2, 63, v0")
    a("s_and_b32 s47, s46, 3")
    a("s_lshr_b32 s48, s46, 2")
    a("s_mul_i32 s49, s47, %d" % CHSZ)
    SB0[0] = 88
    stamp(a, 0)
    a("s_lshl_b32 s3, s2, 2")
    a("s_add_u32 s3, s3, s47")
    a("s_lshl_b32 s50, s3, 6")
    a("s_mul_i32 s51, s48, 3072")
    a("s_add_u32 s51, s51, s49")
    a("s_add_u32 s51, s51, %d" % (8*COPYSZ))
    a("s_mul_i32 s52, s48, 192")
    for pc in range(3):
        a("v_add_u32 v4, s52, v2")
        if pc: a("v_add_u32 v4, %d, v4" % (64*pc))
        a("v_mul_u32_u24 v5, 0x%x, v4" % 52429)
        a("v_lshrrev_b32 v5, 18, v5")
        a("v_mul_u32_u24 v6, 5, v5")
        a("v_sub_u32 v6, v4, v6")
        a("v_min_u32 v6, 3, v6")
        a("v_sub_u32 v5, 63, v5")
        a("v_mul_u32_u24 v5, %d, v5" % (D*64))
        a("v_lshl_add_u32 v%d, v6, 4, v5" % (90+pc))
    sk = a.newlabel("Lsk")
    for pc in range(3):
        if pc == 2:
            a("s_cmp_eq_u32 s48, 1")
            a("s_cbranch_scc1 %s" % sk)
        a("s_add_u32 m0, s51, %d" % (1024*pc))
        a("s_nop 0")
        a("buffer_load_dwordx4 v%d, s[16:19], s50 offen lds" % (90+pc))
    a.label(sk)
    for r in range(4): a("v_mov_b32 v%d, 0" % (84+r))
    for rnd in range(2):
        if rnd:
            a("v_cmp_gt_u32 vcc, 128, v0")
            a("s_and_saveexec_b64 s[58:59], vcc")
        a("v_add_u32 v4, %d, v0" % (512*rnd))
        a("v_mul_u32_u24 v5, 0x%x, v4" % 52429)
        a("v_lshrrev_b32 v5, 23, v5")
        a("v_mul_u32_u24 v6, 160, v5")
        a("v_sub_u32 v6, v4, v6")
        a("v_mul_u32_u24 v5, %d, v5" % CHSZ)
        a("v_lshl_add_u32 v5, v6, 4, v5")
        a("v_add_u32 v5, %d, v5" % (8*COPYSZ + 64*80))
        a("ds_write_b128 v5, v[84:87]")
        if rnd: a("s_mov_b64 exec, -1")
    a("s_lshl_b32 s3, s2, 14")
    for i in range(3):
        b = 12 + 8*i
        for r in range(8): a("v_mov_b32 v%d, 0" % (b+r))
        a("v_add_u32 v4, %d, v0" % (512*i))
        a("v_mul_u32_u24 v5, 0x%x, v4" % 64528)
        a("v_lshrrev_b32 v5, 24, v5")
        a("v_mul_u32_u24 v6, 260, v5")
        a("v_sub_u32 v6, v4, v6")
        a("v_mul_u32_u24 v7, %d, v5" % CHSZ)
        a("v_lshl_add_u32 v%d, v6, 4, v7" % (40+i))
        a("v_lshlrev_b32 v7, 12, v5")
        a("v_add_u32 v7, s3, v7")
        a("v_subrev_u32 v9, 4, v6")
        a("v_lshl_add_u32 v10, v9, 4, v7")
        a("v_cmp_gt_u32 s[60:61], 4, v5")
        a("v_cmp_gt_u32 vcc, 256, v9")
        a("s_and_b64 vcc, vcc, s[60:61]")
        a("s_and_saveexec_b64 s[62:63], vcc")
        a("buffer_load_dwordx4 v[%d:%d], v10, s[24:27], 0 offen" % (b, b+3))
        a("s_mov_b64 exec, -1")
        a("v_add_u32 v9, 1, v9")
        a("v_cmp_gt_u32 vcc, 256, v9")
        a("s_and_b64 vcc, vcc, s[60:61]")
        a("s_and_saveexec_b64 s[62:63], vcc")
        a("buffer_load_dwordx4 v[%d:%d], v10, s[24:27], 0 offen offset:16" % (b+4, b+7))
        a("s_mov_b64 exec, -1")
    stamp(a, 1)
    a("s_waitcnt vmcnt(0) lgkmcnt(0)")
    stamp(a, 2)
    for i in range(3):
        b = 12 + 8*i
        skip = a.newlabel("Lsk")
        if i == 2:
            a("v_cmp_gt_u32 vcc, 16, v0")
            a("s_and_saveexec_b64 s[58:59], vcc")
            a("s_cbranch_execz %s" % skip)
        for r in range(8):
            sh = 1 + r
            o = 44 + 4*(r % 2)
            for m in range(4):
                if sh % 2 == 0:
                    a("v_mov_b32 v%d, v%d" % (o+m, b + sh//2 + m))
                else:
                    lo = b + (sh-1)//2 + m
                    a("v_alignbit_b32 v%d, v%d, v%d, 16" % (o+m, lo+1, lo))
            a("ds_write_b128 v%d, v[%d:%d] offset:%d" % (40+i, o, o+3, r*COPYSZ))
        if i == 2:
            a.label(skip)
            a("s_mov_b64 exec, -1")
    a("s_waitcnt vmcnt(0) lgkmcnt(0)")
    stamp(a, 3)
    a("s_barrier")
    stamp(a, 4)
    a("v_and_b32 v3, 31, v2")
    a("v_lshrrev_b32 v4, 5, v2")
    a("v_and_b32 v5, 7, v3")
    a("v_mul_u32_u24 v5, %d, v5" % COPYSZ)
    a("v_and_b32 v6, 24, v3")
    a("v_lshl_add_u32 v6, v4, 3, v6")
    a("v_lshl_add_u32 v5, v6, 1, v5")
    a("v_add_u32 v5, s49, v5")
    a("s_lshl_b32 s52, s48, 5")
    a("v_add_u32 v7, s52, v3")
    a("v_sub_u32 v8, 63, v7")
    a("v_mul_u32_u24 v8, 80, v8")
    a("v_lshl_add_u32 v8, v4, 4, v8")
    a("v_add_u32 v8, s49, v8")
    a("v_add_u32 v8, %d, v8" % (8*COPYSZ))
    for r in range(16): a("v_mov_b32 v%d, 0" % (96+r))
    a("s_lshl_b32 s53, s48, 3")
    a("s_add_u32 s53, s53, 8")
    UN = 2
    def rd(setb, cbase):
        for c in range(UN):
            for kb in range(2):
                idx = c*2+kb
                a("ds_read_b128 v[%d:%d], v5 offset:%d" % (setb+idx*4, setb+idx*4+3, (cbase+c)*64 + kb*32))
                a("ds_read_b128 v[%d:%d], v8 offset:%d" % (setb+16+idx*4, setb+16+idx*4+3, (cbase+c)*80 + kb*32))
    def mm(setb):
        for idx in range(2*UN):
            a("v_mfma_f32_32x32x16_bf16 v[96:111], v[%d:%d], v[%d:%d], v[96:111]" % (setb+idx*4, setb+idx*4+3, setb+16+idx*4, setb+16+idx*4+3))
    rd(32, 0)
    loop = a.newlabel("Lconv")
    a.label(loop)
    rd(64, UN)
    a("s_waitcnt lgkmcnt(8)")
    mm(32)
    rd(32, 2*UN)
    a("s_waitcnt lgkmcnt(8)")
    mm(64)
    a("v_add_u32 v5, %d, v5" % (2*UN*64))
    a("v_add_u32 v8, %d, v8" % (2*UN*80))
    a("s_sub_u32 s53, s53, 1")
    a("s_cmp_lg_u32 s53, 0")
    a("s_cbranch_scc1 %s" % loop)
    a("s_waitcnt lgkmcnt(0)")
    a("s_nop 15")
    stamp(a, 5)
    a("v_sub_u32 v9, 63, v7")
    a("v_mul_u32_u24 v9, 80, v9")
    a("v_add_u32 v9, s49, v9")
    a("v_lshlrev_b32 v10, 3, v4")
    a("v_sub_u32 v9, v9, v10")
    a("v_add_u32 v9, %d, v9" % (8*COPYSZ + 2*28 - 48))
    for rq in range(4):
        a("ds_read_b64 v[%d:%d], v9 offset:%d" % (48+2*rq, 49+2*rq, 48 - 16*rq))
    a("s_lshr_b32 s54, s47, 1")
    a("s_cmp_eq_u32 s54, 0")
    a("s_cselect_b32 s54, s44, s45")
    a("s_lshl_b32 s55, s54, 16")
    a("s_and_b32 s54, s54, 0xffff0000")
    a("s_and_b32 s56, s47, 1")
    a("s_cmp_eq_u32 s56, 0")
    a("s_cselect_b32 s54, s55, s54")
    a("s_waitcnt lgkmcnt(0)")
    for rq in range(4):
        r = 96+4*rq
        unpack(a, 59, 58, 48+2*rq)
        unpack(a, 57, 56, 49+2*rq)
        for e in range(4):
            a("v_mul_f32 v%d, s54, v%d" % (56+e, 56+e))
        rnd2(a, 60, 56, 57); rnd2(a, 60, 58, 59)
        rnd2(a, 60, r, r+1); rnd2(a, 60, r+2, r+3)
        for e in range(4):
            a("v_add_f32 v%d, v%d, v%d" % (r+e, r+e, 56+e))
        a("v_cvt_pk_bf16_f32 v%d, v%d, v%d" % (r, r, r+1))
        a("v_cvt_pk_bf16_f32 v%d, v%d, v%d" % (r+1, r+2, r+3))
    a("s_barrier")
    a("v_lshlrev_b32 v11, 5, v7")
    a("v_lshl_add_u32 v11, v4, 2, v11")
    a("v_lshlrev_b32 v11, 3, v11")
    a("v_lshl_add_u32 v11, v7, 3, v11")
    a("s_lshl_b32 s56, s47, 1")
    a("v_add_u32 v11, s56, v11")
    for rq in range(4):
        r = 96+4*rq
        a("ds_write_b16 v11, v%d offset:%d" % (r, 64*rq))
        a("ds_write_b16_d16_hi v11, v%d offset:%d" % (r, 64*rq+8))
        a("ds_write_b16 v11, v%d offset:%d" % (r+1, 64*rq+16))
        a("ds_write_b16_d16_hi v11, v%d offset:%d" % (r+1, 64*rq+24))
    a("s_waitcnt lgkmcnt(0)")
    a("s_barrier")
    a("v_lshlrev_b32 v12, 3, v0")
    a("v_lshrrev_b32 v14, 5, v0")
    a("v_lshl_add_u32 v14, v14, 3, v12")
    for i in range(4):
        a("ds_read_b64 v[%d:%d], v14 offset:%d" % (16+2*i, 17+2*i, (4096+128)*i))
    a("s_lshl_b32 s3, s2, 14")
    a("v_add_u32 v13, s3, v12")
    for i in range(4):
        a("s_waitcnt lgkmcnt(%d)" % (3-i))
        a("buffer_store_dwordx2 v[%d:%d], v13, s[28:31], 0 offen" % (16+2*i, 17+2*i))
        a("v_add_u32 v13, 0x%x, v13" % 4096)
    if 'stamp' in EXP: a("s_waitcnt vmcnt(0)")
    stamp(a, 6)
    stamp_out(a, 7, 46)
    SB0[0] = 70
    a("s_branch %s" % end)
    a.label(ltr)
    load_ptr(a, 6, B_WIN); load_ptr(a, 8, B_WOUT)
    a("s_waitcnt lgkmcnt(0)")
    srd_from(a, 16, 6, 0, D*F*2)
    srd_from(a, 20, 4, WS['WINT'], D*F*2)
    srd_from(a, 24, 8, 0, D*FH*2)
    srd_from(a, 28, 4, WS['WOUTT'], D*FH*2)
    a("v_lshrrev_b32 v20, 8, v0")
    a("v_and_b32 v21, 255, v0")
    a("v_lshrrev_b32 v1, 3, v21")
    a("v_and_b32 v2, 7, v21")
    a("v_mul_u32_u24 v4, 640, v2")
    a("v_lshl_add_u32 v4, v1, 1, v4")
    a("v_mul_u32_u24 v22, 5120, v20")
    a("v_add_u32 v4, v4, v22")
    a("v_lshrrev_b32 v5, 2, v21")
    a("v_and_b32 v6, 3, v21")
    a("v_mul_u32_u24 v7, 80, v5")
    a("v_lshl_add_u32 v7, v6, 4, v7")
    a("v_add_u32 v7, v7, v22")
    a("s_sub_u32 s3, s2, %d" % (D//NCH))
    a("s_lshl_b32 s3, s3, 1")
    a("v_add_u32 v23, s3, v20")
    NT = NT_IN + NT_OUT
    NIT = (NT + 2*NTRW - 1)//(2*NTRW)
    for it in range(NIT):
        m_in = 40 + 4*it; m_out = 42 + 4*it
        a("v_cmp_gt_u32 vcc, %d, v23" % NT_IN)
        a("s_mov_b64 s[80:81], vcc")
        a("v_cmp_gt_u32 vcc, %d, v23" % NT)
        a("s_mov_b64 s[82:83], vcc")
        a("v_subrev_u32 v24, %d, v23" % NT_IN)
        a("v_cndmask_b32 v24, v24, v23, s[80:81]")
        a("v_mul_u32_u24 v25, 0x%x, v24" % ((1 << 20)//27 + 1)); a("v_lshrrev_b32 v25, 20, v25")
        a("v_mul_u32_u24 v26, 0x%x, v24" % ((1 << 20)//10 + 1)); a("v_lshrrev_b32 v26, 20, v26")
        a("v_cndmask_b32 v25, v26, v25, s[80:81]")
        a("v_mov_b32 v26, 10"); a("v_cndmask_b32 v26, v26, 27, s[80:81]")
        a("v_mul_u32_u24 v26, v26, v25"); a("v_sub_u32 v26, v24, v26")
        a("v_mov_b32 v27, %d" % (D*2)); a("v_mov_b32 v28, %d" % (F*2)); a("v_cndmask_b32 v27, v27, v28, s[80:81]")
        a("v_mov_b32 v28, %d" % (FH*2)); a("v_mov_b32 v29, %d" % (D*2)); a("v_cndmask_b32 v28, v28, v29, s[80:81]")
        a("v_lshl_add_u32 v29, v25, 5, v1")
        a("v_mul_lo_u32 v29, v29, v27")
        a("v_lshl_add_u32 v29, v2, 4, v29")
        a("v_lshl_add_u32 v29, v26, 7, v29")
        vo = 32 + it
        a("v_lshl_add_u32 v%d, v26, 6, v5" % vo)
        a("v_mul_lo_u32 v%d, v%d, v28" % (vo, vo))
        a("v_lshl_add_u32 v%d, v6, 4, v%d" % (vo, vo))
        a("v_lshl_add_u32 v%d, v25, 6, v%d" % (vo, vo))
        a("s_and_b64 s[%d:%d], s[80:81], s[82:83]" % (m_in, m_in+1))
        a("s_andn2_b64 s[%d:%d], s[82:83], s[80:81]" % (m_out, m_out+1))
        vd = 40 + 4*it
        a("s_mov_b64 exec, s[%d:%d]" % (m_in, m_in+1))
        a("buffer_load_dwordx4 v[%d:%d], v29, s[16:19], 0 offen" % (vd, vd+3))
        a("s_mov_b64 exec, s[%d:%d]" % (m_out, m_out+1))
        a("buffer_load_dwordx4 v[%d:%d], v29, s[24:27], 0 offen" % (vd, vd+3))
        a("s_mov_b64 exec, -1")
        a("v_add_u32 v23, %d, v23" % (2*NTRW))
    a("s_waitcnt vmcnt(0)")
    for it in range(NIT):
        vd = 40 + 4*it
        for e in range(8):
            if e % 2 == 0: a("ds_write_b16 v4, v%d offset:%d" % (vd+e//2, e*80 + it*10240))
            else: a("ds_write_b16_d16_hi v4, v%d offset:%d" % (vd+e//2, e*80 + it*10240))
    a("s_waitcnt lgkmcnt(0)")
    a("s_barrier")
    for it in range(NIT):
        vd = 40 + 4*it
        a("ds_read_b128 v[%d:%d], v7 offset:%d" % (vd, vd+3, it*10240))
    for it in range(NIT):
        vd = 40 + 4*it; vo = 32 + it
        m_in = 40 + 4*it; m_out = 42 + 4*it
        a("s_waitcnt lgkmcnt(%d)" % (NIT-1-it))
        a("s_mov_b64 exec, s[%d:%d]" % (m_in, m_in+1))
        a("buffer_store_dwordx4 v[%d:%d], v%d, s[20:23], 0 offen" % (vd, vd+3, vo))
        a("s_mov_b64 exec, s[%d:%d]" % (m_out, m_out+1))
        a("buffer_store_dwordx4 v[%d:%d], v%d, s[28:31], 0 offen" % (vd, vd+3, vo))
        a("s_mov_b64 exec, -1")
    a.label(end)
    end_kernel(a, name, 176, 102)

def main():
    a = Asm()
    launches = []
    gen_prepa(a, "prepa_kernel"); launches.append(("prepa_kernel", S//PR_ROWS, 320, 0))
    gen_conv(a, "conv_kernel"); launches.append(("conv_kernel", D//NCH + NTRW, 512, NCH*CHSZ))
    gen_e(a, "e1_kernel", (('in', A_Q), 'X1'))
    gen_e(a, "e2_kernel", (('ws', 'X2'), 'X3'))
    l1 = gen_gemm(a, "g1_kernel", ('ws', 'WINT', D*2, F*D*2), ('ws', 'XN', D*2, S*D*2), D, 192, 128, F//192, S//128, epi_g1, {'pre': pre_g1}, NS=4, WPn=4, WQn=2, xcd=(2,4))
    gen_ln2(a, "ln2_kernel")
    l2 = gen_gemm(a, "g2_kernel", ('ws', 'Z2T', S*2, FH*S*2+4096), ('in', B_WSP, S*2, S*S*2), S, 112, 64, 8, S//64, epi_g2, {'in_slots': [B_BSP], 'pblocked': True, 'pre': pre_g2, 'short_from': 6}, NS=6, WPn=1, WQn=4, nL=2, xcd=(2,4))
    l3 = gen_gemm(a, "g3a_kernel", ('ws', 'WOUTT', FH*2, D*FH*2+4096), ('ws', 'H', FH*2, S*FH*2+4096), FH, 80, 64, D//80, S//64, epi_g3, {'xin': 'X1', 'out': 'X2', 'pre': pre_g3}, NS=7, WPn=1, WQn=4, nL=2, xcd=(2,4))
    gen_gemm(a, "g3b_kernel", ('ws', 'WOUTT', FH*2, D*FH*2+4096), ('ws', 'H', FH*2, S*FH*2+4096), FH, 80, 64, D//80, S//64, epi_g3, {'xin': 'X3', 'out': 'dout', 'in_slots': [D_OUT], 'pre': pre_g3}, NS=7, WPn=1, WQn=4, nL=2, xcd=(2,4))
    for lay in range(2):
        launches.append(("e%d_kernel" % (lay+1), S//16, 1024, 160*144))
        launches.append(("g1_kernel",) + l1)
        launches.append(("ln2_kernel", S//LN2_ROWS, 1024, 256))
        launches.append(("g2_kernel",) + l2)
        launches.append(("g3a_kernel" if lay == 0 else "g3b_kernel",) + l3)
    nl = int(sys.argv[2]) if len(sys.argv) > 2 else len(launches)
    out = []
    for (k, g, b, l) in launches[:nl]:
        out.append("; @launch kernel=%s grid=(%d,1,1) block=(%d,1,1) lds=%d" % (k, g, b, l))
    out.append('.amdgcn_target "amdgcn-amd-amdhsa--gfx950"')
    out.append(".text")
    out += a.lines
    out.append('.section .rodata,"a"')
    for (k, nv, ns) in a.kernels:
        nv8 = (nv + 7)//8*8
        out.append(".p2align 6")
        out.append(".amdhsa_kernel %s" % k)
        out.append("  .amdhsa_next_free_vgpr %d" % nv8)
        out.append("  .amdhsa_next_free_sgpr %d" % ns)
        out.append("  .amdhsa_accum_offset %d" % nv8)
        out.append("  .amdhsa_group_segment_fixed_size 0")
        out.append("  .amdhsa_kernarg_size 112")
        out.append("  .amdhsa_user_sgpr_count 2")
        out.append("  .amdhsa_user_sgpr_kernarg_segment_ptr 1")
        out.append("  .amdhsa_system_sgpr_workgroup_id_x 1")
        out.append(".end_amdhsa_kernel")
    open(sys.argv[1], "w").write("\n".join(out) + "\n")
    import json
    json.dump(WS, open(sys.argv[1] + ".ws.json", "w"))

if __name__ == "__main__":
    main()
```

```python
import math, sys, os
EXP = os.environ.get('EXP', '')
NLG = int(os.environ.get('NLG', '4'))
WQ2 = int(os.environ.get('WQ2', '4'))
WQ3 = int(os.environ.get('WQ3', '4'))

S = 2048; D = 640; F = 1728; FH = 864
NAME = "interleave_layers__ssm_conv_h3__mixer_gmlp__prompt"

A_Q, A_K, A_V, A_SHK, A_SSMK, A_SSMD, B_X, B_WIN, B_WSP, B_BSP, B_WOUT, D_OUT, D_DBG, D_WS = [8*i for i in range(14)]

def al(x, a=4096): return (x + a - 1)//a*a
WS = {}
_off = 0
def ws_alloc(name, nbytes):
    global _off
    WS[name] = _off
    _off = al(_off + nbytes + 4096)
ws_alloc('Y', S*D*2)
ws_alloc('WINT', F*D*2)
ws_alloc('WOUTT', D*FH*2)
ws_alloc('X1', S*D*2)
ws_alloc('XN', S*D*2)
ws_alloc('Z', S*F*2)
ws_alloc('Z2T', FH*S*2)
ws_alloc('H', S*FH*2)
ws_alloc('X2', S*D*2)
ws_alloc('X3', S*D*2)
ws_alloc('KVR', D*64*80)
WS_TOTAL = _off

class Asm:
    def __init__(self):
        self.lines = []
        self.kernels = []
        self.lab = 0
    def __call__(self, s):
        self.lines.append("    " + s)
    def label(self, l):
        self.lines.append(l + ":")
    def newlabel(self, p="L"):
        self.lab += 1
        return "%s_%d" % (p, self.lab)
    def raw(self, s):
        self.lines.append(s)

def begin_kernel(a, name):
    a.raw(".p2align 8")
    a.raw(".type %s,@function" % name)
    a.raw("%s:" % name)

def end_kernel(a, name, nv, ns=102):
    a("s_endpgm")
    a.kernels.append((name, nv, ns))

def load_ptr(a, sdst, slot):
    a("s_load_dwordx2 s[%d:%d], s[0:1], %d" % (sdst, sdst+1, slot))

def srd_from(a, sd, sptr, off, nbytes):
    if off:
        a("s_add_u32 s%d, s%d, 0x%x" % (sd, sptr, off))
        a("s_addc_u32 s%d, s%d, 0" % (sd+1, sptr+1))
    else:
        a("s_mov_b32 s%d, s%d" % (sd, sptr))
        a("s_mov_b32 s%d, s%d" % (sd+1, sptr+1))
    a("s_mov_b32 s%d, 0x%x" % (sd+2, nbytes))
    a("s_mov_b32 s%d, 0x00020000" % (sd+3))

def wave_sum(a, vsrc, vt, s0):
    a("s_nop 1")
    a("v_add_f32_dpp v%d, v%d, v%d quad_perm:[1,0,3,2] row_mask:0xf bank_mask:0xf" % (vt, vsrc, vsrc))
    a("s_nop 1")
    a("v_add_f32_dpp v%d, v%d, v%d quad_perm:[2,3,0,1] row_mask:0xf bank_mask:0xf" % (vt, vt, vt))
    a("s_nop 1")
    a("v_add_f32_dpp v%d, v%d, v%d row_half_mirror row_mask:0xf bank_mask:0xf" % (vt, vt, vt))
    a("s_nop 1")
    a("v_add_f32_dpp v%d, v%d, v%d row_mirror row_mask:0xf bank_mask:0xf" % (vt, vt, vt))
    a("s_nop 1")
    for i in range(4):
        a("v_readlane_b32 s%d, v%d, %d" % (s0+i, vt, 16*i))
    a("s_nop 1")
    a("v_mov_b32 v%d, s%d" % (vt, s0))
    for i in range(1, 4):
        a("v_add_f32 v%d, s%d, v%d" % (vt, s0+i, vt))

def rnd2(a, vpk, va, vb):
    a("v_cvt_pk_bf16_f32 v%d, v%d, v%d" % (vpk, va, vb))
    a("v_lshlrev_b32 v%d, 16, v%d" % (va, vpk))
    a("v_and_b32 v%d, 0xffff0000, v%d" % (vb, vpk))

def unpack(a, vlo, vhi, vsrc):
    a("v_lshlrev_b32 v%d, 16, v%d" % (vlo, vsrc))
    a("v_and_b32 v%d, 0xffff0000, v%d" % (vhi, vsrc))

def layernorm_regs(a, xs, n, vt, vm, vr, vpk, s0, valid=None, nvalid_tail=None):
    ln_stats(a, xs, n, vt, vm, vr, vpk, s0, valid, nvalid_tail)
    for i in range(0, len(xs), 2):
        x0, x1 = xs[i], xs[i+1]
        a("v_sub_f32 v%d, v%d, v%d" % (x0, x0, vm))
        a("v_sub_f32 v%d, v%d, v%d" % (x1, x1, vm))
        rnd2(a, vpk, x0, x1)
        a("v_mul_f32 v%d, v%d, v%d" % (x0, x0, vr))
        a("v_mul_f32 v%d, v%d, v%d" % (x1, x1, vr))
        rnd2(a, vpk, x0, x1)


def wave_sum2(a, va, vb, s0):
    for pat in ("quad_perm:[1,0,3,2]", "quad_perm:[2,3,0,1]", "row_half_mirror", "row_mirror"):
        a("s_nop 0")
        a("v_add_f32_dpp v%d, v%d, v%d %s row_mask:0xf bank_mask:0xf" % (va, va, va, pat))
        a("v_add_f32_dpp v%d, v%d, v%d %s row_mask:0xf bank_mask:0xf" % (vb, vb, vb, pat))
    a("s_nop 0")
    for i in range(4):
        a("v_readlane_b32 s%d, v%d, %d" % (s0+i, va, 16*i))
    for i in range(4):
        a("v_readlane_b32 s%d, v%d, %d" % (s0+4+i, vb, 16*i))
    a("v_mov_b32 v%d, s%d" % (va, s0))
    a("v_mov_b32 v%d, s%d" % (vb, s0+4))
    for i in range(1, 4):
        a("v_add_f32 v%d, s%d, v%d" % (va, s0+i, va))
        a("v_add_f32 v%d, s%d, v%d" % (vb, s0+4+i, vb))

def ln_stats(a, xs, n, vt, vm, vr, vpk, s0, valid=None, nvalid_tail=None):
    a("v_add_f32 v%d, v%d, v%d" % (vm, xs[0], xs[1]))
    a("v_mul_f32 v%d, v%d, v%d" % (vr, xs[0], xs[0]))
    a("v_fmac_f32 v%d, v%d, v%d" % (vr, xs[1], xs[1]))
    for x in xs[2:]:
        a("v_add_f32 v%d, v%d, v%d" % (vm, vm, x))
        a("v_fmac_f32 v%d, v%d, v%d" % (vr, x, x))
    a("s_nop 0")
    wave_sum2(a, vm, vr, s0)
    a("v_mul_f32 v%d, 0x%08x, v%d" % (vm, f2u(1.0/n), vm))
    a("v_mul_f32 v%d, 0x%08x, v%d" % (vr, f2u(1.0/n), vr))
    a("v_fma_f32 v%d, -v%d, v%d, v%d" % (vr, vm, vm, vr))
    a("v_max_f32 v%d, 0, v%d" % (vr, vr))
    rnd2(a, vpk, vm, vr)
    a("v_add_f32 v%d, 0x%08x, v%d" % (vr, f2u(1e-5), vr))
    a("v_cvt_pk_bf16_f32 v%d, v%d, v%d" % (vpk, vr, vr))
    a("v_lshlrev_b32 v%d, 16, v%d" % (vr, vpk))
    a("v_sqrt_f32 v%d, v%d" % (vr, vr))
    a("s_nop 0")
    a("v_cvt_pk_bf16_f32 v%d, v%d, v%d" % (vpk, vr, vr))
    a("v_lshlrev_b32 v%d, 16, v%d" % (vr, vpk))
    a("v_rcp_f32 v%d, v%d" % (vr, vr))
    a("s_nop 0")

import struct
def f2u(f):
    return struct.unpack("<I", struct.pack("<f", f))[0]

def gen_e(a, name, src):
    srcspec, dstname = src
    begin_kernel(a, name)
    end = a.newlabel("Lend")
    a("s_cmp_ge_u32 s2, %d" % (S//16))
    a("s_cbranch_scc1 %s" % end)
    load_ptr(a, 4, D_WS)
    if srcspec[0] == 'in':
        load_ptr(a, 6, srcspec[1])
    a("s_waitcnt lgkmcnt(0)")
    if srcspec[0] == 'in':
        srd_from(a, 8, 6, 0, S*D*2)
    else:
        srd_from(a, 8, 4, WS[srcspec[1]], S*D*2)
    srd_from(a, 12, 4, WS['Y'], S*D*2)
    srd_from(a, 16, 4, WS[dstname], S*D*2)
    srd_from(a, 20, 4, WS['XN'], S*D*2)
    a("v_lshrrev_b32 v1, 6, v0")
    a("s_lshl_b32 s3, s2, 4")
    a("v_add_u32 v1, s3, v1")
    a("v_and_b32 v2, 63, v0")
    a("v_mul_u32_u24 v1, %d, v1" % (D*2))
    a("v_lshl_add_u32 v1, v2, 3, v1")
    a("v_cmp_gt_u32 vcc, 32, v2")
    a("v_cndmask_b32 v58, 0, 1.0, vcc")
    a("s_mov_b64 s[30:31], vcc")
    for r in (8, 9, 14, 15): a("v_mov_b32 v%d, 0" % r)
    a("v_lshrrev_b32 v3, 3, v0")
    a("v_and_b32 v59, 7, v0")
    a("v_lshlrev_b32 v60, 14, v3")
    a("v_lshl_add_u32 v60, v59, 4, v60")
    a("s_lshl_b32 s3, s2, 7")
    a("buffer_load_dwordx4 v[16:19], v60, s[12:15], s3 offen")
    a("v_cmp_gt_u32 vcc, 256, v0")
    a("s_and_saveexec_b64 s[28:29], vcc")
    a("v_add_u32 v60, 0x%x, v60" % (128*16384))
    a("buffer_load_dwordx4 v[44:47], v60, s[12:15], s3 offen")
    a("s_mov_b64 exec, -1")
    a("buffer_load_dwordx2 v[4:5], v1, s[8:11], 0 offen")
    a("buffer_load_dwordx2 v[6:7], v1, s[8:11], 0 offen offset:512")
    a("s_mov_b64 exec, s[30:31]")
    a("buffer_load_dwordx2 v[8:9], v1, s[8:11], 0 offen offset:1024")
    a("s_mov_b64 exec, -1")
    a("v_mul_u32_u24 v3, 144, v3")
    a("v_lshl_add_u32 v3, v59, 4, v3")
    a("s_waitcnt vmcnt(3)")
    a("ds_write_b128 v3, v[16:19]")
    a("s_mov_b64 exec, s[28:29]")
    a("v_cmp_gt_u32 vcc, 256, v0")
    a("s_and_saveexec_b64 s[28:29], vcc")
    a("ds_write_b128 v3, v[44:47] offset:%d" % (128*144))
    a("s_mov_b64 exec, -1")
    a("s_waitcnt lgkmcnt(0)")
    a("s_barrier")
    a("v_lshrrev_b32 v3, 6, v0")
    a("v_lshlrev_b32 v3, 3, v3")
    a("v_mul_u32_u24 v59, 144, v2")
    a("v_add_u32 v3, v3, v59")
    a("ds_read_b64 v[10:11], v3")
    a("ds_read_b64 v[12:13], v3 offset:%d" % (64*144))
    a("s_mov_b64 exec, s[30:31]")
    a("ds_read_b64 v[14:15], v3 offset:%d" % (128*144))
    a("s_mov_b64 exec, -1")
    X = list(range(20, 32)); L = list(range(32, 44)); Yv = list(range(44, 56))
    a("s_waitcnt vmcnt(0) lgkmcnt(0)")
    for i in range(6):
        unpack(a, X[2*i], X[2*i+1], 4+i)
        a("v_mov_b32 v%d, v%d" % (L[2*i], X[2*i]))
        a("v_mov_b32 v%d, v%d" % (L[2*i+1], X[2*i+1]))
    layernorm_regs(a, L, D, 61, 62, 63, 57, 32, valid=58, nvalid_tail=4)
    for i in range(6):
        unpack(a, Yv[2*i], Yv[2*i+1], 10+i)
    for i in range(0, 12, 2):
        a("v_mul_f32 v%d, v%d, v%d" % (L[i], L[i], Yv[i]))
        a("v_mul_f32 v%d, v%d, v%d" % (L[i+1], L[i+1], Yv[i+1]))
        rnd2(a, 57, L[i], L[i+1])
        a("v_add_f32 v%d, v%d, v%d" % (X[i], X[i], L[i]))
        a("v_add_f32 v%d, v%d, v%d" % (X[i+1], X[i+1], L[i+1]))
        rnd2(a, 4+i//2, X[i], X[i+1])
    a("buffer_store_dwordx2 v[4:5], v1, s[16:19], 0 offen")
    a("buffer_store_dwordx2 v[6:7], v1, s[16:19], 0 offen offset:512")
    a("s_mov_b64 exec, s[30:31]")
    a("buffer_store_dwordx2 v[8:9], v1, s[16:19], 0 offen offset:1024")
    a("s_mov_b64 exec, -1")
    layernorm_regs(a, X, D, 61, 62, 63, 57, 32, valid=58, nvalid_tail=4)
    for i in range(6):
        a("v_cvt_pk_bf16_f32 v%d, v%d, v%d" % (10+i, X[2*i], X[2*i+1]))
    a("buffer_store_dwordx2 v[10:11], v1, s[20:23], 0 offen")
    a("buffer_store_dwordx2 v[12:13], v1, s[20:23], 0 offen offset:512")
    a("s_mov_b64 exec, s[30:31]")
    a("buffer_store_dwordx2 v[14:15], v1, s[20:23], 0 offen offset:1024")
    a.label(end)
    end_kernel(a, name, 64, 40)

LN2_ROWS = 16
LN2_PITCH = 48
def gen_ln2(a, name):
    begin_kernel(a, name)
    end = a.newlabel("Lend")
    a("s_cmp_ge_u32 s2, %d" % (S//LN2_ROWS))
    a("s_cbranch_scc1 %s" % end)
    load_ptr(a, 4, D_WS)
    a("s_waitcnt lgkmcnt(0)")
    srd_from(a, 8, 4, WS['Z'], S*F*2)
    srd_from(a, 12, 4, WS['Z2T'], FH*S*2)
    a("v_and_b32 v2, 63, v0")
    a("v_lshrrev_b32 v3, 6, v0")
    a("v_cmp_gt_u32 vcc, 54, v2")
    a("v_cndmask_b32 v4, 0, 1.0, vcc")
    a("s_mov_b64 s[30:31], vcc")
    a("s_mul_i32 s3, s2, %d" % (16*F*2))
    a("s_add_u32 s3, s3, %d" % (FH*2))
    a("v_mul_u32_u24 v7, %d, v3" % (F*2))
    a("v_lshl_add_u32 v7, v2, 4, v7")
    X = list(range(24, 40))
    for i in range(8):
        a("v_mov_b32 v%d, 0" % (12+i))
    a("s_mov_b64 exec, s[30:31]")
    a("buffer_load_dwordx4 v[12:15], v7, s[8:11], s3 offen")
    a("buffer_load_dwordx4 v[16:19], v7, s[8:11], s3 offen offset:%d" % (54*16))
    a("s_mov_b64 exec, -1")
    a("v_lshlrev_b32 v8, 1, v0")
    PB = 48
    for r in range(16):
        if r and r % 1 == 0 and (r*F*2) > 4095 and r % 1 == 0:
            pass
        a("s_add_u32 s24, s3, %d" % (r*F*2))
        a("buffer_load_ushort v%d, v8, s[8:11], s24 offen" % (PB+r))
    a("s_waitcnt vmcnt(16)")
    for i in range(8):
        unpack(a, X[2*i], X[2*i+1], 12+i)
    ln_stats(a, X, FH, 40, 41, 42, 43, 32, valid=4)
    a("v_lshlrev_b32 v9, 3, v3")
    a("v_mov_b32 v44, v41"); a("v_mov_b32 v45, v42")
    a("ds_write_b64 v9, v[44:45]")
    a("s_waitcnt lgkmcnt(0)")
    a("s_barrier")
    a("v_cmp_gt_u32 vcc, %d, v0" % FH)
    a("s_and_saveexec_b64 s[28:29], vcc")
    a("s_cbranch_execz %s" % end)
    a("v_mov_b32 v9, 0")
    for i in range(8):
        a("ds_read_b128 v[%d:%d], v9 offset:%d" % (64+4*i, 67+4*i, 16*i))
    a("s_waitcnt vmcnt(0) lgkmcnt(0)")
    for r in range(0, 16, 2):
        x0, x1 = PB+r, PB+r+1
        a("v_lshlrev_b32 v%d, 16, v%d" % (x0, x0))
        a("v_lshlrev_b32 v%d, 16, v%d" % (x1, x1))
        a("v_sub_f32 v%d, v%d, v%d" % (x0, x0, 64+2*r))
        a("v_sub_f32 v%d, v%d, v%d" % (x1, x1, 64+2*r+2))
        rnd2(a, 43, x0, x1)
        a("v_mul_f32 v%d, v%d, v%d" % (x0, x0, 64+2*r+1))
        a("v_mul_f32 v%d, v%d, v%d" % (x1, x1, 64+2*r+3))
        a("v_cvt_pk_bf16_f32 v%d, v%d, v%d" % (24+r//2, x0, x1))
    a("v_lshlrev_b32 v12, 5, v0")
    a("s_mul_i32 s3, s2, %d" % (FH*32))
    a("buffer_store_dwordx4 v[24:27], v12, s[12:15], s3 offen")
    a("buffer_store_dwordx4 v[28:31], v12, s[12:15], s3 offen offset:16")
    a.label(end)
    end_kernel(a, name, 96, 40)

SB0 = [70]
def stamp(a, i):
    if 'stamp' in EXP:
        a("s_memtime s[%d:%d]" % (SB0[0]+2*i, SB0[0]+1+2*i))
        a("s_waitcnt lgkmcnt(0)")
def stamp_out(a, n, swave=44):
    if 'stamp' not in EXP: return
    a("s_load_dwordx2 s[64:65], s[0:1], %d" % D_DBG)
    a("s_waitcnt lgkmcnt(0)")
    a("s_mov_b32 s66, 256"); a("s_mov_b32 s67, 0x20000")
    l = a.newlabel("Lst")
    a("s_cmp_lg_u32 s2, 8")
    a("s_cbranch_scc1 %s" % l)
    a("s_cmp_lg_u32 s%d, 0" % swave)
    a("s_cbranch_scc1 %s" % l)
    a("v_mov_b32 v1, 0")
    for i in range(n):
        a("s_sub_u32 s63, s%d, s%d" % (SB0[0]+2*i, SB0[0]))
        a("v_mov_b32 v2, s63")
        a("buffer_store_dword v2, v1, s[64:67], 0 offen offset:%d" % (4*i))
    a.label(l)
def gen_gemm(a, name, Pd, Qd, K, TP, TQ, nP, nQ, epi, epi_args, NS=4, WPn=2, WQn=2, xcd=None, nL=4):
    nW = WPn*WQn
    begin_kernel(a, name)
    end = a.newlabel("Lend"); lload = a.newlabel("Lload")
    gp, gq = xcd
    assert gp*gq == 8 and nQ % gq == 0
    ppg = (nP + gp - 1)//gp
    qpg = nQ//gq
    nWG = 8*ppg*qpg
    NPF = 0
    lpfw = a.newlabel("Lpfw")
    a("s_cmp_ge_u32 s2, %d" % (nWG+NPF))
    a("s_cbranch_scc1 %s" % end)
    load_ptr(a, 4, D_WS)
    sl = 6
    ptrs = {}
    for d in (Pd, Qd):
        if d[0] == 'in':
            load_ptr(a, sl, d[1]); ptrs[d[1]] = sl; sl += 2
    for slot in epi_args.get('in_slots', []):
        load_ptr(a, sl, slot); ptrs[slot] = sl; sl += 2
    assert sl <= 16
    if NPF:
        a("s_cmp_lt_u32 s2, %d" % NPF)
        a("s_cbranch_scc1 %s" % lpfw)
        a("s_sub_u32 s2, s2, %d" % NPF)
    a("s_and_b32 s40, s2, 7")
    a("s_lshr_b32 s41, s2, 3")
    a("s_and_b32 s42, s40, %d" % (gp-1))
    a("s_lshr_b32 s43, s40, %d" % int(math.log2(gp)))
    a("s_mov_b32 s45, 0x%x" % ((1 << 32)//ppg + 1))
    a("s_mul_hi_u32 s46, s41, s45")
    a("s_mul_i32 s45, s46, %d" % ppg)
    a("s_sub_u32 s45, s41, s45")
    a("s_mul_i32 s42, s42, %d" % ppg)
    a("s_add_u32 s42, s42, s45")
    a("s_mul_i32 s43, s43, %d" % qpg)
    a("s_add_u32 s43, s43, s46")
    a("s_cmp_ge_u32 s42, %d" % nP)
    a("s_cbranch_scc1 %s" % end)
    a("s_mov_b32 s39, s42")
    a("s_mul_i32 s42, s42, %d" % TP)
    if epi_args.get('short_from') is not None:
        a("s_sub_u32 s38, s39, %d" % epi_args['short_from'])
        a("s_max_i32 s38, s38, 0")
        a("s_lshl_b32 s38, s38, 4")
        a("s_sub_u32 s42, s42, s38")
    a("s_mul_i32 s43, s43, %d" % TQ)
    a("v_lshrrev_b32 v1, 6, v0")
    a("s_nop 0")
    a("v_readfirstlane_b32 s44, v1")
    a("v_and_b32 v2, 63, v0")
    a("v_lshrrev_b32 v5, 4, v2")
    a("s_waitcnt lgkmcnt(0)")
    stamp(a, 0)
    SB = (TP+TQ)*128
    nsteps = (K + 63)//64
    lastpartial = (K % 64) != 0
    npro = min(NS-1, nsteps)
    lpf = a.newlabel("Lpf")
    a("s_cmp_ge_u32 s44, %d" % (nW+nL))
    a("s_cbranch_scc1 %s" % lpf)
    a("s_cmp_ge_u32 s44, %d" % nW)
    a("s_cbranch_scc1 %s" % lload)
    wp, wq = TP//WPn, TQ//WQn
    nPf, nQf = wp//16, wq//16
    nH = (NS+1)//2
    VA = 8
    def vaddr(isQ, kk, half): return VA + ((2 if isQ else 0) + kk)*nH + half
    a("v_and_b32 v3, 15, v2")
    a("v_lshrrev_b32 v4, 1, v3")
    a("v_and_b32 v4, 7, v4")
    a("v_xor_b32 v4, v4, v5")
    a("v_lshlrev_b32 v4, 4, v4")
    a("v_lshl_add_u32 v4, v3, 7, v4")
    a("s_and_b32 s45, s44, %d" % (WPn-1))
    a("s_lshr_b32 s46, s44, %d" % int(math.log2(WPn)))
    a("s_mul_i32 s47, s45, %d" % (wp*128))
    a("s_mul_i32 s48, s46, %d" % (wq*128))
    a("s_add_u32 s48, s48, %d" % (TP*128))
    for isQ in (0, 1):
        for kk in range(2):
            for half in range(nH):
                v = vaddr(isQ, kk, half)
                a("v_add_u32 v%d, s%d, v4" % (v, 48 if isQ else 47))
                if kk: a("v_xor_b32 v%d, 64, v%d" % (v, v))
                if half: a("v_add_u32 v%d, %d, v%d" % (v, 2*SB*half, v))
    assert SB + max(nPf, nQf)*2048 < 65536
    VF = (VA + 4*nH + 3)//4*4
    def vPf(kk, i): return VF + (kk*nPf + i)*4
    def vQf(kk, j): return VF + (2*nPf + kk*nQf + j)*4
    VACC = VF + 2*(nPf+nQf)*4
    def acc(i, j): return VACC + (i*nQf + j)*4
    VEND = VACC + nPf*nQf*4
    for r in range(VACC, VEND):
        a("v_mov_b32 v%d, 0" % r)
    def reads(step, kk):
        if 'noread' in EXP: return
        st = step % NS
        half = st//2; soff = (st % 2)*SB
        order = [('P', 0)] + [('Q', j) for j in range(nQf)] + [('P', i) for i in range(1, nPf)]
        for (t, i) in order:
            if t == 'P':
                a("ds_read_b128 v[%d:%d], v%d offset:%d" % (vPf(kk,i), vPf(kk,i)+3, vaddr(0,kk,half), soff + i*2048))
            else:
                a("ds_read_b128 v[%d:%d], v%d offset:%d" % (vQf(kk,i), vQf(kk,i)+3, vaddr(1,kk,half), soff + i*2048))
    def mfmas(kk):
        if 'nomfma' in EXP: return
        for i in range(nPf):
            for j in range(nQf):
                a("v_mfma_f32_16x16x32_bf16 v[%d:%d], v[%d:%d], v[%d:%d], v[%d:%d]" % (
                    acc(i,j), acc(i,j)+3, vPf(kk,i), vPf(kk,i)+3, vQf(kk,j), vQf(kk,j)+3, acc(i,j), acc(i,j)+3))
    nfr = nPf + nQf
    VPRE = VEND
    ctx = dict(a=a, acc=acc, nPf=nPf, nQf=nQf, wp=wp, wq=wq, VF=VF, VACC=VACC, ptrs=ptrs, VPRE=VPRE)
    a("v_and_b32 v3, 15, v2")
    a("s_mul_i32 s47, s46, %d" % wq)
    a("s_add_u32 s47, s47, s43")
    a("v_add_u32 v3, s47, v3")
    a("v_lshrrev_b32 v4, 4, v2")
    a("v_lshlrev_b32 v4, 2, v4")
    a("s_mul_i32 s47, s45, %d" % wp)
    a("s_add_u32 s47, s47, s42")
    a("v_add_u32 v4, s47, v4")
    n0 = len(a.lines)
    VEND += epi_args['pre'](ctx, epi_args)
    deferred = a.lines[n0:]; del a.lines[n0:]
    stamp(a, 1)
    a("s_barrier")
    stamp(a, 2)
    reads(0, 0)
    for k in range(nsteps):
        has2 = not (lastpartial and k == nsteps-1)
        if has2:
            reads(k, 1)
            a("s_waitcnt lgkmcnt(%d)" % nfr)
        else:
            a("s_waitcnt lgkmcnt(0)")
        mfmas(0)
        if k+1 < nsteps:
            a("s_waitcnt lgkmcnt(0)")
            a("s_barrier")
            reads(k+1, 0)
            if k == 2: a.lines += deferred
            if has2: mfmas(1)
        elif has2:
            a("s_waitcnt lgkmcnt(0)")
            mfmas(1)
    a("s_nop 15")
    stamp(a, 3)
    if 'noepi' not in EXP: epi(ctx, epi_args)
    stamp(a, 4)
    if 'stamp' in EXP: a("s_waitcnt vmcnt(0)")
    stamp(a, 5)
    stamp_out(a, 6)
    a("s_branch %s" % end)
    a.label(lload)
    def mk(sd, d):
        if d[0] == 'in': srd_from(a, sd, ptrs[d[1]], 0, d[3])
        else: srd_from(a, sd, 4, WS[d[1]], d[3])
    mk(16, Pd); mk(20, Qd)
    assert TP % 8 == 0 and TQ % 8 == 0
    nJ = (TP+TQ)//8
    nJP = TP//8
    VD = 8
    a("v_lshrrev_b32 v3, 3, v2")
    a("v_and_b32 v4, 7, v2")
    llabs = [a.newlabel("Lld") for _ in range(nL)]
    for l in range(1, nL):
        a("s_cmp_eq_u32 s44, %d" % (nW+l))
        a("s_cbranch_scc1 %s" % llabs[l])
    nI = 0
    for l in range(nL):
        a.label(llabs[l])
        Js = list(range(l, nJ, nL))
        nI = max(nI, len(Js))
        for idx, J in enumerate(Js):
            isP = J < nJP
            JJ = J if isP else J - nJP
            pitch = Pd[2] if isP else Qd[2]
            t0 = 42 if isP else 43
            a("v_add_u32 v6, %d, v5" % ((4*JJ) % 8))
            a("v_and_b32 v6, 7, v6")
            a("v_xor_b32 v6, v6, v4")
            a("v_add_u32 v7, s%d, v3" % t0)
            if JJ: a("v_add_u32 v7, %d, v7" % (8*JJ))
            if isP and epi_args.get('pblocked'):
                a("v_lshlrev_b32 v7, 5, v7")
                a("v_lshrrev_b32 v%d, 1, v6" % (VD+idx))
                a("v_mul_u32_u24 v%d, %d, v%d" % (VD+idx, FH*32, VD+idx))
                a("v_add_u32 v7, v7, v%d" % (VD+idx))
                a("v_and_b32 v6, 1, v6")
                a("v_lshl_add_u32 v%d, v6, 4, v7" % (VD+idx))
            else:
                a("s_mov_b32 s47, %d" % pitch)
                a("v_mul_lo_u32 v7, v7, s47")
                a("v_lshl_add_u32 v%d, v6, 4, v7" % (VD+idx))
        def dma_stage(step):
            st = step % NS
            a("s_mov_b32 s50, %d" % (step*128))
            a("s_mov_b32 s51, %d" % (step*4*FH*32))
            for idx, J in enumerate(Js):
                if 'nodma' in EXP: break
                isP = J < nJP
                a("s_mov_b32 m0, %d" % (st*SB + J*1024))
                a("s_nop 0")
                a("buffer_load_dwordx4 v%d, s[%d:%d], s%d offen lds" % (VD+idx, 16 if isP else 20, 19 if isP else 23, 51 if (isP and epi_args.get('pblocked')) else 50))
        n = len(Js)
        for st in range(npro): dma_stage(st)
        issued = npro
        assert n*(NS-1) <= 63
        a("s_waitcnt vmcnt(%d)" % (n*(issued-1)))
        a("s_barrier")
        for k in range(nsteps-1):
            a("s_waitcnt vmcnt(%d)" % (n*(issued-1-(k+1))))
            a("s_barrier")
            if issued < nsteps:
                dma_stage(issued); issued += 1
        a("s_branch %s" % end)
    if NPF:
        a.label(lpfw)
        a("v_cmp_gt_u32 vcc, 64, v0")
        a("s_cbranch_vccz %s" % end)
        a("s_waitcnt lgkmcnt(0)")
        mk(16, Pd); mk(20, Qd)
        a("s_and_b32 s40, s2, 7")
        a("s_lshr_b32 s41, s2, 3")
        a("s_and_b32 s42, s40, %d" % (gp-1))
        a("s_lshr_b32 s43, s40, %d" % int(math.log2(gp)))
        QR = qpg*TQ
        rpw = QR//32
        nq = (rpw + 7)//8
        a("v_lshrrev_b32 v3, 3, v0"); a("v_and_b32 v4, 7, v0")
        a("s_mul_i32 s45, s43, %d" % QR)
        a("s_mul_i32 s46, s41, %d" % rpw)
        a("s_add_u32 s45, s45, s46")
        for i in range(nq):
            a("v_add_u32 v5, s45, v3")
            if i: a("v_add_u32 v5, %d, v5" % (8*i))
            a("s_mov_b32 s47, %d" % Qd[2])
            a("v_mul_lo_u32 v5, v5, s47")
            a("v_lshl_add_u32 v%d, v4, 4, v5" % (8+i))
        PRr = epi_args['l2pf']
        nb1k = (PRr*32 + 1023)//1024
        tot = 4*nb1k
        npp = (tot + 31)//32
        a("s_mul_i32 s48, s42, %d" % (PRr*32))
        for i in range(npp):
            a("s_add_u32 s46, s41, %d" % (32*i))
            a("s_min_u32 s46, s46, %d" % (tot-1))
            a("s_mov_b32 s47, 0x%x" % ((1 << 32)//nb1k + 1))
            a("s_mul_hi_u32 s49, s46, s47")
            a("s_mul_i32 s47, s49, %d" % nb1k)
            a("s_sub_u32 s46, s46, s47")
            a("s_mul_i32 s49, s49, %d" % (FH*32))
            a("s_lshl_b32 s46, s46, 10")
            a("s_add_u32 s49, s49, s46")
            a("s_add_u32 s49, s49, s48")
            a("v_lshlrev_b32 v5, 4, v0")
            a("v_add_u32 v%d, s49, v5" % (8+nq+i))
        a("s_mov_b32 s50, 0"); a("s_mov_b32 s51, 0"); a("s_mov_b32 s52, %d" % nsteps)
        lp = a.newlabel("Lpl")
        a.label(lp)
        for i in range(nq):
            a("buffer_load_dwordx4 v[20:23], v%d, s[20:23], s50 offen" % (8+i))
        for i in range(npp):
            a("buffer_load_dwordx4 v[20:23], v%d, s[16:19], s51 offen" % (8+nq+i))
        a("s_waitcnt vmcnt(24)")
        a("s_add_u32 s50, s50, 128"); a("s_add_u32 s51, s51, %d" % (4*FH*32))
        a("s_sub_u32 s52, s52, 1"); a("s_cmp_lg_u32 s52, 0"); a("s_cbranch_scc1 %s" % lp)
        a("s_branch %s" % end)
    a.label(lpf)
    if epi_args.get('l2pf'):
        mk(16, Pd); mk(20, Qd)
        a("s_and_b32 s40, s2, 7")
        a("s_lshr_b32 s41, s2, 3")
        a("s_and_b32 s42, s40, %d" % (gp-1))
        a("s_lshr_b32 s43, s40, %d" % int(math.log2(gp)))
        NJX = ppg*qpg
        QR = qpg*TQ
        rpw = QR//NJX
        nq = (rpw + 7)//8
        a("v_lshrrev_b32 v3, 3, v2"); a("v_and_b32 v4, 7, v2")
        a("s_mul_i32 s45, s43, %d" % QR)
        a("s_mul_i32 s46, s41, %d" % rpw)
        a("s_add_u32 s45, s45, s46")
        for i in range(nq):
            a("v_add_u32 v5, s45, v3")
            if i: a("v_add_u32 v5, %d, v5" % (8*i))
            a("s_mov_b32 s47, %d" % Qd[2])
            a("v_mul_lo_u32 v5, v5, s47")
            a("v_lshl_add_u32 v%d, v4, 4, v5" % (8+i))
        PRr = epi_args['l2pf']
        nb1k = (PRr*32 + 1023)//1024
        tot = 4*nb1k
        npp = (tot + NJX - 1)//NJX
        a("s_mul_i32 s48, s42, %d" % (PRr*32))
        for i in range(npp):
            a("s_add_u32 s46, s41, %d" % (NJX*i))
            a("s_min_u32 s46, s46, %d" % (tot-1))
            a("s_mov_b32 s47, 0x%x" % ((1 << 32)//nb1k + 1))
            a("s_mul_hi_u32 s49, s46, s47")
            a("s_mul_i32 s47, s49, %d" % nb1k)
            a("s_sub_u32 s46, s46, s47")
            a("s_mul_i32 s49, s49, %d" % (FH*32))
            a("s_lshl_b32 s46, s46, 10")
            a("s_add_u32 s49, s49, s46")
            a("s_add_u32 s49, s49, s48")
            a("v_lshlrev_b32 v5, 4, v2")
            a("v_add_u32 v%d, s49, v5" % (8+nq+i))
        def pf_stage(step):
            a("s_mov_b32 s50, %d" % (step*128)); a("s_mov_b32 s51, %d" % (step*4*FH*32))
            for i in range(nq):
                a("buffer_load_dwordx4 v[20:23], v%d, s[20:23], s50 offen" % (8+i))
            for i in range(npp):
                a("buffer_load_dwordx4 v[20:23], v%d, s[16:19], s51 offen" % (8+nq+i))
        PD0 = int(os.environ.get('PD0', '8')); PR = int(os.environ.get('PRR', '2'))
        nxt = npro
        for _ in range(PD0):
            if nxt < nsteps: pf_stage(nxt); nxt += 1
        a("s_barrier")
        for k in range(nsteps-1):
            for _ in range(PR):
                if nxt < nsteps:
                    a("s_waitcnt vmcnt(48)")
                    pf_stage(nxt); nxt += 1
            a("s_barrier")
    a.label(end)
    end_kernel(a, name, max(VEND, VD+nI), 96)
    return (nWG+NPF, 64*(nW+nL+(1 if epi_args.get('l2pf') else 0)), NS*SB)

def pre_g1(c, args):
    a = c['a']
    srd_from(a, 24, 4, WS['Z'], S*F*2)
    a("v_mul_u32_u24 v5, %d, v3" % (F*2))
    a("v_lshl_add_u32 v5, v4, 1, v5")
    return 0

def epi_g1(c, args):
    a = c['a']
    T = c['VF']
    K0 = T; K1 = T+2; ONE = T+4
    a("v_mov_b32 v%d, 0x%08x" % (K0, f2u(-2.302208198))); a("v_mov_b32 v%d, 0x%08x" % (K0+1, f2u(-2.302208198)))
    a("v_mov_b32 v%d, 0x%08x" % (K1, f2u(-2.302208198*0.044715))); a("v_mov_b32 v%d, 0x%08x" % (K1+1, f2u(-2.302208198*0.044715)))
    a("v_mov_b32 v%d, 1.0" % ONE); a("v_mov_b32 v%d, 1.0" % (ONE+1))
    U = T+8
    for j in range(c['nQf']):
        for i in range(c['nPf']):
            r = c['acc'](i, j)
            rnd2(a, U+4, r, r+1); rnd2(a, U+4, r+2, r+3)
            for h in range(2):
                x = r+2*h; t = U+2*h
                a("v_pk_mul_f32 v[%d:%d], v[%d:%d], v[%d:%d]" % (t, t+1, x, x+1, x, x+1))
                a("v_pk_fma_f32 v[%d:%d], v[%d:%d], v[%d:%d], v[%d:%d]" % (t, t+1, t, t+1, K1, K1+1, K0, K0+1))
                a("v_pk_mul_f32 v[%d:%d], v[%d:%d], v[%d:%d]" % (t, t+1, t, t+1, x, x+1))
            for e in range(4):
                a("v_exp_f32 v%d, v%d" % (U+e, U+e))
            a("s_nop 0")
            for h in range(2):
                t = U+2*h
                a("v_pk_add_f32 v[%d:%d], v[%d:%d], v[%d:%d]" % (t, t+1, t, t+1, ONE, ONE+1))
            for e in range(4):
                a("v_rcp_f32 v%d, v%d" % (U+e, U+e))
            a("s_nop 0")
            for h in range(2):
                x = r+2*h; t = U+2*h
                a("v_pk_mul_f32 v[%d:%d], v[%d:%d], v[%d:%d]" % (x, x+1, x, x+1, t, t+1))
            a("v_cvt_pk_bf16_f32 v%d, v%d, v%d" % (r, r, r+1))
            a("v_cvt_pk_bf16_f32 v%d, v%d, v%d" % (r+1, r+2, r+3))
            a("buffer_store_dwordx2 v[%d:%d], v5, s[24:27], 0 offen offset:%d" % (r, r+1, i*32))
        a("v_add_u32 v5, %d, v5" % (16*F*2))

def pre_g2(c, args):
    a = c['a']
    srd_from(a, 24, 4, WS['Z'], S*F*2)
    srd_from(a, 28, 4, WS['H'], S*FH*2)
    srd_from(a, 32, c['ptrs'][B_BSP], 0, S*2)
    a("v_mul_u32_u24 v5, %d, v3" % (F*2))
    a("v_lshl_add_u32 v5, v4, 1, v5")
    a("v_mul_u32_u24 v6, %d, v3" % (FH*2))
    a("v_lshl_add_u32 v6, v4, 1, v6")
    a("v_lshlrev_b32 v7, 1, v3")
    T = c['VPRE']
    nPf, nQf = c['nPf'], c['nQf']
    for j in range(nQf):
        a("buffer_load_ushort v%d, v7, s[32:35], 0 offen offset:%d" % (T+j, 32*j))
    for j in range(nQf):
        for i in range(nPf):
            z = T+4+(j*nPf+i)*2
            a("buffer_load_dwordx2 v[%d:%d], v5, s[24:27], 0 offen offset:%d" % (z, z+1, i*32))
        a("v_add_u32 v5, %d, v5" % (16*F*2))
    return 4 + nPf*nQf*2

def epi_g2(c, args):
    a = c['a']
    T = c['VPRE']
    nPf, nQf = c['nPf'], c['nQf']
    a("s_waitcnt vmcnt(0)")
    U = c['VF']
    for j in range(nQf):
        a("v_lshlrev_b32 v%d, 16, v%d" % (T+j, T+j))
        for i in range(nPf):
            r = c['acc'](i, j); z = T+4+(j*nPf+i)*2
            rnd2(a, U, r, r+1); rnd2(a, U, r+2, r+3)
            for e in range(4):
                a("v_add_f32 v%d, v%d, v%d" % (r+e, r+e, T+j))
            rnd2(a, U, r, r+1); rnd2(a, U, r+2, r+3)
            unpack(a, U, U+1, z); unpack(a, U+2, U+3, z+1)
            for h in range(2):
                a("v_pk_mul_f32 v[%d:%d], v[%d:%d], v[%d:%d]" % (r+2*h, r+2*h+1, r+2*h, r+2*h+1, U+2*h, U+2*h+1))
            a("v_cvt_pk_bf16_f32 v%d, v%d, v%d" % (r, r, r+1))
            a("v_cvt_pk_bf16_f32 v%d, v%d, v%d" % (r+1, r+2, r+3))
            sk = None
            if args.get('short_from') is not None and i == nPf-1:
                sk = a.newlabel("Lsk")
                a("s_cmp_ge_u32 s39, %d" % args['short_from'])
                a("s_cbranch_scc1 %s" % sk)
            a("buffer_store_dwordx2 v[%d:%d], v6, s[28:31], 0 offen offset:%d" % (r, r+1, i*32))
            if sk: a.label(sk)
        a("v_add_u32 v6, %d, v6" % (16*FH*2))

def pre_g3(c, args):
    a = c['a']
    srd_from(a, 24, 4, WS[args['xin']], S*D*2)
    if args['out'] == 'dout':
        srd_from(a, 28, c['ptrs'][D_OUT], 0, S*D*2)
    else:
        srd_from(a, 28, 4, WS[args['out']], S*D*2)
    a("v_mul_u32_u24 v5, %d, v3" % (D*2))
    a("v_lshl_add_u32 v5, v4, 1, v5")
    a("v_mov_b32 v6, v5")
    T = c['VPRE']
    nPf, nQf = c['nPf'], c['nQf']
    for j in range(nQf):
        for i in range(nPf):
            z = T+(j*nPf+i)*2
            a("buffer_load_dwordx2 v[%d:%d], v5, s[24:27], 0 offen offset:%d" % (z, z+1, i*32))
        a("v_add_u32 v5, %d, v5" % (16*D*2))
    return nPf*nQf*2

def epi_g3(c, args):
    a = c['a']
    T = c['VPRE']
    nPf, nQf = c['nPf'], c['nQf']
    a("s_waitcnt vmcnt(0)")
    U = c['VF']
    for j in range(nQf):
        for i in range(nPf):
            r = c['acc'](i, j); z = T+(j*nPf+i)*2
            rnd2(a, U, r, r+1); rnd2(a, U, r+2, r+3)
            unpack(a, U, U+1, z); unpack(a, U+2, U+3, z+1)
            for h in range(2):
                a("v_pk_add_f32 v[%d:%d], v[%d:%d], v[%d:%d]" % (r+2*h, r+2*h+1, r+2*h, r+2*h+1, U+2*h, U+2*h+1))
            a("v_cvt_pk_bf16_f32 v%d, v%d, v%d" % (r, r, r+1))
            a("v_cvt_pk_bf16_f32 v%d, v%d, v%d" % (r+1, r+2, r+3))
            a("buffer_store_dwordx2 v[%d:%d], v6, s[28:31], 0 offen offset:%d" % (r, r+1, i*32))
        a("v_add_u32 v6, %d, v6" % (16*D*2))

NKV = S//32
NT_IN = (D//32)*(F//64)
NT_OUT = (FH//32)*(D//64)
COPYSZ = 4160
KVSZ = 96*80
KVIMG = 64*80
CHSZ = 8*COPYSZ + KVSZ
PR_ROWS = 16
def gen_prepa(a, name):
    begin_kernel(a, name)
    end = a.newlabel("Lend")
    a("s_cmp_ge_u32 s2, %d" % (S//PR_ROWS))
    a("s_cbranch_scc1 %s" % end)
    load_ptr(a, 4, D_WS)
    load_ptr(a, 6, A_K); load_ptr(a, 8, A_V); load_ptr(a, 10, A_SHK)
    a("s_waitcnt lgkmcnt(0)")
    srd_from(a, 16, 6, 0, S*D*2)
    srd_from(a, 20, 8, 0, S*D*2)
    srd_from(a, 24, 10, 0, D*8)
    srd_from(a, 28, 4, WS['KVR'], D*KVIMG)
    R = PR_ROWS
    a("s_mul_i32 s3, s2, %d" % (R*D*2))
    a("v_lshlrev_b32 v1, 2, v0")
    a("v_add_u32 v1, s3, v1")
    a("v_subrev_u32 v2, %d, v1" % (3*D*2))
    a("v_lshlrev_b32 v3, 4, v0")
    a("buffer_load_dwordx4 v[4:7], v3, s[24:27], 0 offen")
    KB = 16; VB = KB + R + 3
    def ld(dst, vbase, i, srd):
        if i % 3 == 0 and i:
            a("v_add_u32 v%d, %d, v%d" % (vbase, 3*1280, vbase))
        a("buffer_load_dword v%d, v%d, s[%d:%d], 0 offen offset:%d" % (dst, vbase, srd, srd+3, (i % 3)*1280))
    for i in range(R+3): ld(KB+i, 2, i, 16)
    for i in range(R): ld(VB+i, 1, i, 20)
    a("s_waitcnt vmcnt(0)")
    W = 60; K0 = 70; K1 = K0 + R + 3; O0 = K1 + R + 3; O1 = O0 + R
    for ch in range(2):
        for t in range(4):
            src = 4 + 2*ch + t//2
            if t % 2 == 0: a("v_lshlrev_b32 v%d, 16, v%d" % (W+4*ch+t, src))
            else: a("v_and_b32 v%d, 0xffff0000, v%d" % (W+4*ch+t, src))
    for i in range(R+3): unpack(a, K0+i, K1+i, KB+i)
    for r in range(R):
        for t in range(4):
            a("v_mul_f32 v8, v%d, v%d" % (W+3-t, K0+r+t))
            a("v_mul_f32 v9, v%d, v%d" % (W+4+3-t, K1+r+t))
            rnd2(a, 10, 8, 9)
            if t == 0:
                a("v_mov_b32 v%d, v8" % (O0+r)); a("v_mov_b32 v%d, v9" % (O1+r))
            else:
                a("v_add_f32 v%d, v%d, v8" % (O0+r, O0+r)); a("v_add_f32 v%d, v%d, v9" % (O1+r, O1+r))
                rnd2(a, 10, O0+r, O1+r)
        unpack(a, 8, 9, VB+r)
        a("v_mul_f32 v%d, v%d, v8" % (O0+r, O0+r)); a("v_mul_f32 v%d, v%d, v9" % (O1+r, O1+r))
    for ch in range(2):
        b = O0 if ch == 0 else O1
        for m in range(R//2):
            a("v_cvt_pk_bf16_f32 v%d, v%d, v%d" % (16+8*ch+m, b+R-1-2*m, b+R-2-2*m))
    a("s_lshr_b32 s3, s2, 1")
    a("s_mul_i32 s3, s3, %d" % (D*64))
    a("s_and_b32 s12, s2, 1")
    a("s_xor_b32 s12, s12, 1")
    a("s_lshl_b32 s12, s12, 5")
    a("s_add_u32 s3, s3, s12")
    a("v_lshlrev_b32 v3, 7, v0")
    a("v_add_u32 v3, s3, v3")
    for ch in range(2):
        for m in range(2):
            a("buffer_store_dwordx4 v[%d:%d], v3, s[28:31], 0 offen offset:%d" % (16+8*ch+4*m, 19+8*ch+4*m, 64*ch+16*m))
    a.label(end)
    end_kernel(a, name, O1+R, 40)

NCH = 4
NTRW = 96
def gen_conv(a, name):
    begin_kernel(a, name)
    end = a.newlabel("Lend"); ltr = a.newlabel("Ltr")
    a("s_cmp_ge_u32 s2, %d" % (D//NCH + NTRW))
    a("s_cbranch_scc1 %s" % end)
    load_ptr(a, 4, D_WS)
    a("s_cmp_ge_u32 s2, %d" % (D//NCH))
    a("s_cbranch_scc1 %s" % ltr)
    load_ptr(a, 12, A_SSMK); load_ptr(a, 14, A_SSMD)
    a("s_waitcnt lgkmcnt(0)")
    srd_from(a, 16, 4, WS['KVR'], D*KVIMG)
    a("s_lshl_b32 s3, s2, 3")
    a("s_add_u32 s14, s14, s3"); a("s_addc_u32 s15, s15, 0")
    a("s_load_dwordx2 s[44:45], s[14:15], 0")
    srd_from(a, 24, 12, 0, D*S*2)
    srd_from(a, 28, 4, WS['Y'], S*D*2)
    a("v_lshrrev_b32 v1, 6, v0")
    a("s_nop 0")
    a("v_readfirstlane_b32 s46, v1")
    a("v_and_b32 v2, 63, v0")
    a("s_and_b32 s47, s46, 3")
    a("s_lshr_b32 s48, s46, 2")
    a("s_mul_i32 s49, s47, %d" % CHSZ)
    SB0[0] = 88
    stamp(a, 0)
    a("s_lshl_b32 s3, s2, 2")
    a("s_add_u32 s3, s3, s47")
    a("s_lshl_b32 s50, s3, 6")
    a("s_mul_i32 s51, s48, 3072")
    a("s_add_u32 s51, s51, s49")
    a("s_add_u32 s51, s51, %d" % (8*COPYSZ))
    a("s_mul_i32 s52, s48, 192")
    for pc in range(3):
        a("v_add_u32 v4, s52, v2")
        if pc: a("v_add_u32 v4, %d, v4" % (64*pc))
        a("v_mul_u32_u24 v5, 0x%x, v4" % 52429)
        a("v_lshrrev_b32 v5, 18, v5")
        a("v_mul_u32_u24 v6, 5, v5")
        a("v_sub_u32 v6, v4, v6")
        a("v_min_u32 v6, 3, v6")
        a("v_sub_u32 v5, 63, v5")
        a("v_mul_u32_u24 v5, %d, v5" % (D*64))
        a("v_lshl_add_u32 v%d, v6, 4, v5" % (90+pc))
    sk = a.newlabel("Lsk")
    for pc in range(3):
        if pc == 2:
            a("s_cmp_eq_u32 s48, 1")
            a("s_cbranch_scc1 %s" % sk)
        a("s_add_u32 m0, s51, %d" % (1024*pc))
        a("s_nop 0")
        a("buffer_load_dwordx4 v%d, s[16:19], s50 offen lds" % (90+pc))
    a.label(sk)
    for r in range(4): a("v_mov_b32 v%d, 0" % (84+r))
    for rnd in range(2):
        if rnd:
            a("v_cmp_gt_u32 vcc, 128, v0")
            a("s_and_saveexec_b64 s[58:59], vcc")
        a("v_add_u32 v4, %d, v0" % (512*rnd))
        a("v_mul_u32_u24 v5, 0x%x, v4" % 52429)
        a("v_lshrrev_b32 v5, 23, v5")
        a("v_mul_u32_u24 v6, 160, v5")
        a("v_sub_u32 v6, v4, v6")
        a("v_mul_u32_u24 v5, %d, v5" % CHSZ)
        a("v_lshl_add_u32 v5, v6, 4, v5")
        a("v_add_u32 v5, %d, v5" % (8*COPYSZ + 64*80))
        a("ds_write_b128 v5, v[84:87]")
        if rnd: a("s_mov_b64 exec, -1")
    a("s_lshl_b32 s3, s2, 14")
    for i in range(3):
        b = 12 + 8*i
        for r in range(8): a("v_mov_b32 v%d, 0" % (b+r))
        a("v_add_u32 v4, %d, v0" % (512*i))
        a("v_mul_u32_u24 v5, 0x%x, v4" % 64528)
        a("v_lshrrev_b32 v5, 24, v5")
        a("v_mul_u32_u24 v6, 260, v5")
        a("v_sub_u32 v6, v4, v6")
        a("v_mul_u32_u24 v7, %d, v5" % CHSZ)
        a("v_lshl_add_u32 v%d, v6, 4, v7" % (40+i))
        a("v_lshlrev_b32 v7, 12, v5")
        a("v_add_u32 v7, s3, v7")
        a("v_subrev_u32 v9, 4, v6")
        a("v_lshl_add_u32 v10, v9, 4, v7")
        a("v_cmp_gt_u32 s[60:61], 4, v5")
        a("v_cmp_gt_u32 vcc, 256, v9")
        a("s_and_b64 vcc, vcc, s[60:61]")
        a("s_and_saveexec_b64 s[62:63], vcc")
        a("buffer_load_dwordx4 v[%d:%d], v10, s[24:27], 0 offen" % (b, b+3))
        a("s_mov_b64 exec, -1")
        a("v_add_u32 v9, 1, v9")
        a("v_cmp_gt_u32 vcc, 256, v9")
        a("s_and_b64 vcc, vcc, s[60:61]")
        a("s_and_saveexec_b64 s[62:63], vcc")
        a("buffer_load_dwordx4 v[%d:%d], v10, s[24:27], 0 offen offset:16" % (b+4, b+7))
        a("s_mov_b64 exec, -1")
    stamp(a, 1)
    a("s_waitcnt vmcnt(0) lgkmcnt(0)")
    stamp(a, 2)
    for i in range(3):
        b = 12 + 8*i
        skip = a.newlabel("Lsk")
        if i == 2:
            a("v_cmp_gt_u32 vcc, 16, v0")
            a("s_and_saveexec_b64 s[58:59], vcc")
            a("s_cbranch_execz %s" % skip)
        for r in range(8):
            sh = 1 + r
            o = 44 + 4*(r % 2)
            for m in range(4):
                if sh % 2 == 0:
                    a("v_mov_b32 v%d, v%d" % (o+m, b + sh//2 + m))
                else:
                    lo = b + (sh-1)//2 + m
                    a("v_alignbit_b32 v%d, v%d, v%d, 16" % (o+m, lo+1, lo))
            a("ds_write_b128 v%d, v[%d:%d] offset:%d" % (40+i, o, o+3, r*COPYSZ))
        if i == 2:
            a.label(skip)
            a("s_mov_b64 exec, -1")
    a("s_waitcnt vmcnt(0) lgkmcnt(0)")
    stamp(a, 3)
    a("s_barrier")
    stamp(a, 4)
    a("v_and_b32 v3, 31, v2")
    a("v_lshrrev_b32 v4, 5, v2")
    a("v_and_b32 v5, 7, v3")
    a("v_mul_u32_u24 v5, %d, v5" % COPYSZ)
    a("v_and_b32 v6, 24, v3")
    a("v_lshl_add_u32 v6, v4, 3, v6")
    a("v_lshl_add_u32 v5, v6, 1, v5")
    a("v_add_u32 v5, s49, v5")
    a("s_lshl_b32 s52, s48, 5")
    a("v_add_u32 v7, s52, v3")
    a("v_sub_u32 v8, 63, v7")
    a("v_mul_u32_u24 v8, 80, v8")
    a("v_lshl_add_u32 v8, v4, 4, v8")
    a("v_add_u32 v8, s49, v8")
    a("v_add_u32 v8, %d, v8" % (8*COPYSZ))
    for r in range(16): a("v_mov_b32 v%d, 0" % (96+r))
    a("s_lshl_b32 s53, s48, 3")
    a("s_add_u32 s53, s53, 8")
    UN = 2
    def rd(setb, cbase):
        for c in range(UN):
            for kb in range(2):
                idx = c*2+kb
                a("ds_read_b128 v[%d:%d], v5 offset:%d" % (setb+idx*4, setb+idx*4+3, (cbase+c)*64 + kb*32))
                a("ds_read_b128 v[%d:%d], v8 offset:%d" % (setb+16+idx*4, setb+16+idx*4+3, (cbase+c)*80 + kb*32))
    def mm(setb):
        for idx in range(2*UN):
            a("v_mfma_f32_32x32x16_bf16 v[96:111], v[%d:%d], v[%d:%d], v[96:111]" % (setb+idx*4, setb+idx*4+3, setb+16+idx*4, setb+16+idx*4+3))
    rd(32, 0)
    loop = a.newlabel("Lconv")
    a.label(loop)
    rd(64, UN)
    a("s_waitcnt lgkmcnt(8)")
    mm(32)
    rd(32, 2*UN)
    a("s_waitcnt lgkmcnt(8)")
    mm(64)
    a("v_add_u32 v5, %d, v5" % (2*UN*64))
    a("v_add_u32 v8, %d, v8" % (2*UN*80))
    a("s_sub_u32 s53, s53, 1")
    a("s_cmp_lg_u32 s53, 0")
    a("s_cbranch_scc1 %s" % loop)
    a("s_waitcnt lgkmcnt(0)")
    a("s_nop 15")
    stamp(a, 5)
    a("v_sub_u32 v9, 63, v7")
    a("v_mul_u32_u24 v9, 80, v9")
    a("v_add_u32 v9, s49, v9")
    a("v_lshlrev_b32 v10, 3, v4")
    a("v_sub_u32 v9, v9, v10")
    a("v_add_u32 v9, %d, v9" % (8*COPYSZ + 2*28 - 48))
    for rq in range(4):
        a("ds_read_b64 v[%d:%d], v9 offset:%d" % (48+2*rq, 49+2*rq, 48 - 16*rq))
    a("s_lshr_b32 s54, s47, 1")
    a("s_cmp_eq_u32 s54, 0")
    a("s_cselect_b32 s54, s44, s45")
    a("s_lshl_b32 s55, s54, 16")
    a("s_and_b32 s54, s54, 0xffff0000")
    a("s_and_b32 s56, s47, 1")
    a("s_cmp_eq_u32 s56, 0")
    a("s_cselect_b32 s54, s55, s54")
    a("s_waitcnt lgkmcnt(0)")
    for rq in range(4):
        r = 96+4*rq
        unpack(a, 59, 58, 48+2*rq)
        unpack(a, 57, 56, 49+2*rq)
        for e in range(4):
            a("v_mul_f32 v%d, s54, v%d" % (56+e, 56+e))
        rnd2(a, 60, 56, 57); rnd2(a, 60, 58, 59)
        rnd2(a, 60, r, r+1); rnd2(a, 60, r+2, r+3)
        for e in range(4):
            a("v_add_f32 v%d, v%d, v%d" % (r+e, r+e, 56+e))
        a("v_cvt_pk_bf16_f32 v%d, v%d, v%d" % (r, r, r+1))
        a("v_cvt_pk_bf16_f32 v%d, v%d, v%d" % (r+1, r+2, r+3))
    a("s_barrier")
    a("v_lshlrev_b32 v11, 5, v7")
    a("v_lshl_add_u32 v11, v4, 2, v11")
    a("v_lshlrev_b32 v11, 3, v11")
    a("v_lshl_add_u32 v11, v7, 3, v11")
    a("s_lshl_b32 s56, s47, 1")
    a("v_add_u32 v11, s56, v11")
    for rq in range(4):
        r = 96+4*rq
        a("ds_write_b16 v11, v%d offset:%d" % (r, 64*rq))
        a("ds_write_b16_d16_hi v11, v%d offset:%d" % (r, 64*rq+8))
        a("ds_write_b16 v11, v%d offset:%d" % (r+1, 64*rq+16))
        a("ds_write_b16_d16_hi v11, v%d offset:%d" % (r+1, 64*rq+24))
    a("s_waitcnt lgkmcnt(0)")
    a("s_barrier")
    a("v_lshlrev_b32 v12, 3, v0")
    a("v_lshrrev_b32 v14, 5, v0")
    a("v_lshl_add_u32 v14, v14, 3, v12")
    for i in range(4):
        a("ds_read_b64 v[%d:%d], v14 offset:%d" % (16+2*i, 17+2*i, (4096+128)*i))
    a("s_lshl_b32 s3, s2, 14")
    a("v_add_u32 v13, s3, v12")
    for i in range(4):
        a("s_waitcnt lgkmcnt(%d)" % (3-i))
        a("buffer_store_dwordx2 v[%d:%d], v13, s[28:31], 0 offen" % (16+2*i, 17+2*i))
        a("v_add_u32 v13, 0x%x, v13" % 4096)
    if 'stamp' in EXP: a("s_waitcnt vmcnt(0)")
    stamp(a, 6)
    stamp_out(a, 7, 46)
    SB0[0] = 70
    a("s_branch %s" % end)
    a.label(ltr)
    load_ptr(a, 6, B_WIN); load_ptr(a, 8, B_WOUT)
    a("s_waitcnt lgkmcnt(0)")
    srd_from(a, 16, 6, 0, D*F*2)
    srd_from(a, 20, 4, WS['WINT'], D*F*2)
    srd_from(a, 24, 8, 0, D*FH*2)
    srd_from(a, 28, 4, WS['WOUTT'], D*FH*2)
    a("v_lshrrev_b32 v20, 8, v0")
    a("v_and_b32 v21, 255, v0")
    a("v_lshrrev_b32 v1, 3, v21")
    a("v_and_b32 v2, 7, v21")
    a("v_mul_u32_u24 v4, 640, v2")
    a("v_lshl_add_u32 v4, v1, 1, v4")
    a("v_mul_u32_u24 v22, 5120, v20")
    a("v_add_u32 v4, v4, v22")
    a("v_lshrrev_b32 v5, 2, v21")
    a("v_and_b32 v6, 3, v21")
    a("v_mul_u32_u24 v7, 80, v5")
    a("v_lshl_add_u32 v7, v6, 4, v7")
    a("v_add_u32 v7, v7, v22")
    a("s_sub_u32 s3, s2, %d" % (D//NCH))
    a("s_lshl_b32 s3, s3, 1")
    a("v_add_u32 v23, s3, v20")
    NT = NT_IN + NT_OUT
    NIT = (NT + 2*NTRW - 1)//(2*NTRW)
    for it in range(NIT):
        m_in = 40 + 4*it; m_out = 42 + 4*it
        a("v_cmp_gt_u32 vcc, %d, v23" % NT_IN)
        a("s_mov_b64 s[80:81], vcc")
        a("v_cmp_gt_u32 vcc, %d, v23" % NT)
        a("s_mov_b64 s[82:83], vcc")
        a("v_subrev_u32 v24, %d, v23" % NT_IN)
        a("v_cndmask_b32 v24, v24, v23, s[80:81]")
        a("v_mul_u32_u24 v25, 0x%x, v24" % ((1 << 20)//27 + 1)); a("v_lshrrev_b32 v25, 20, v25")
        a("v_mul_u32_u24 v26, 0x%x, v24" % ((1 << 20)//10 + 1)); a("v_lshrrev_b32 v26, 20, v26")
        a("v_cndmask_b32 v25, v26, v25, s[80:81]")
        a("v_mov_b32 v26, 10"); a("v_cndmask_b32 v26, v26, 27, s[80:81]")
        a("v_mul_u32_u24 v26, v26, v25"); a("v_sub_u32 v26, v24, v26")
        a("v_mov_b32 v27, %d" % (D*2)); a("v_mov_b32 v28, %d" % (F*2)); a("v_cndmask_b32 v27, v27, v28, s[80:81]")
        a("v_mov_b32 v28, %d" % (FH*2)); a("v_mov_b32 v29, %d" % (D*2)); a("v_cndmask_b32 v28, v28, v29, s[80:81]")
        a("v_lshl_add_u32 v29, v25, 5, v1")
        a("v_mul_lo_u32 v29, v29, v27")
        a("v_lshl_add_u32 v29, v2, 4, v29")
        a("v_lshl_add_u32 v29, v26, 7, v29")
        vo = 32 + it
        a("v_lshl_add_u32 v%d, v26, 6, v5" % vo)
        a("v_mul_lo_u32 v%d, v%d, v28" % (vo, vo))
        a("v_lshl_add_u32 v%d, v6, 4, v%d" % (vo, vo))
        a("v_lshl_add_u32 v%d, v25, 6, v%d" % (vo, vo))
        a("s_and_b64 s[%d:%d], s[80:81], s[82:83]" % (m_in, m_in+1))
        a("s_andn2_b64 s[%d:%d], s[82:83], s[80:81]" % (m_out, m_out+1))
        vd = 40 + 4*it
        a("s_mov_b64 exec, s[%d:%d]" % (m_in, m_in+1))
        a("buffer_load_dwordx4 v[%d:%d], v29, s[16:19], 0 offen" % (vd, vd+3))
        a("s_mov_b64 exec, s[%d:%d]" % (m_out, m_out+1))
        a("buffer_load_dwordx4 v[%d:%d], v29, s[24:27], 0 offen" % (vd, vd+3))
        a("s_mov_b64 exec, -1")
        a("v_add_u32 v23, %d, v23" % (2*NTRW))
    a("s_waitcnt vmcnt(0)")
    for it in range(NIT):
        vd = 40 + 4*it
        for e in range(8):
            if e % 2 == 0: a("ds_write_b16 v4, v%d offset:%d" % (vd+e//2, e*80 + it*10240))
            else: a("ds_write_b16_d16_hi v4, v%d offset:%d" % (vd+e//2, e*80 + it*10240))
    a("s_waitcnt lgkmcnt(0)")
    a("s_barrier")
    for it in range(NIT):
        vd = 40 + 4*it
        a("ds_read_b128 v[%d:%d], v7 offset:%d" % (vd, vd+3, it*10240))
    for it in range(NIT):
        vd = 40 + 4*it; vo = 32 + it
        m_in = 40 + 4*it; m_out = 42 + 4*it
        a("s_waitcnt lgkmcnt(%d)" % (NIT-1-it))
        a("s_mov_b64 exec, s[%d:%d]" % (m_in, m_in+1))
        a("buffer_store_dwordx4 v[%d:%d], v%d, s[20:23], 0 offen" % (vd, vd+3, vo))
        a("s_mov_b64 exec, s[%d:%d]" % (m_out, m_out+1))
        a("buffer_store_dwordx4 v[%d:%d], v%d, s[28:31], 0 offen" % (vd, vd+3, vo))
        a("s_mov_b64 exec, -1")
    if 'nowarm' not in EXP:
        load_ptr(a, 6, B_WSP)
        a("s_waitcnt lgkmcnt(0)")
        srd_from(a, 16, 6, 0, S*S*2)
        a("s_sub_u32 s3, s2, %d" % (D//NCH))
        a("s_mul_i32 s3, s3, %d" % (11*8192))
        a("v_lshlrev_b32 v1, 4, v0")
        for i in range(11):
            a("buffer_load_dwordx4 v[8:11], v1, s[16:19], s3 offen")
            a("s_add_u32 s3, s3, 8192")
    a.label(end)
    end_kernel(a, name, 176, 102)

def main():
    a = Asm()
    launches = []
    gen_prepa(a, "prepa_kernel"); launches.append(("prepa_kernel", S//PR_ROWS, 320, 0))
    gen_conv(a, "conv_kernel"); launches.append(("conv_kernel", D//NCH + NTRW, 512, NCH*CHSZ))
    gen_e(a, "e1_kernel", (('in', A_Q), 'X1'))
    gen_e(a, "e2_kernel", (('ws', 'X2'), 'X3'))
    l1 = gen_gemm(a, "g1_kernel", ('ws', 'WINT', D*2, F*D*2), ('ws', 'XN', D*2, S*D*2), D, 192, 128, F//192, S//128, epi_g1, {'pre': pre_g1}, NS=4, WPn=4, WQn=2, xcd=(2,4))
    gen_ln2(a, "ln2_kernel")
    l2 = gen_gemm(a, "g2_kernel", ('ws', 'Z2T', S*2, FH*S*2+4096), ('in', B_WSP, S*2, S*S*2), S, 112, 64, 8, S//64, epi_g2, {'in_slots': [B_BSP], 'pblocked': True, 'pre': pre_g2, 'short_from': 6, 'l2pf': (448 if 'l2' in EXP else 0)}, NS=6, WPn=1, WQn=WQ2, nL=NLG, xcd=(2,4))
    l3 = gen_gemm(a, "g3a_kernel", ('ws', 'WOUTT', FH*2, D*FH*2+4096), ('ws', 'H', FH*2, S*FH*2+4096), FH, 80, 64, D//80, S//64, epi_g3, {'xin': 'X1', 'out': 'X2', 'pre': pre_g3}, NS=7, WPn=1, WQn=WQ3, nL=NLG, xcd=(2,4))
    gen_gemm(a, "g3b_kernel", ('ws', 'WOUTT', FH*2, D*FH*2+4096), ('ws', 'H', FH*2, S*FH*2+4096), FH, 80, 64, D//80, S//64, epi_g3, {'xin': 'X3', 'out': 'dout', 'in_slots': [D_OUT], 'pre': pre_g3}, NS=7, WPn=1, WQn=WQ3, nL=NLG, xcd=(2,4))
    for lay in range(2):
        launches.append(("e%d_kernel" % (lay+1), S//16, 1024, 160*144))
        launches.append(("g1_kernel",) + l1)
        launches.append(("ln2_kernel", S//LN2_ROWS, 1024, 256))
        launches.append(("g2_kernel",) + l2)
        launches.append(("g3a_kernel" if lay == 0 else "g3b_kernel",) + l3)
    nl = int(sys.argv[2]) if len(sys.argv) > 2 else len(launches)
    out = []
    for (k, g, b, l) in launches[:nl]:
        out.append("; @launch kernel=%s grid=(%d,1,1) block=(%d,1,1) lds=%d" % (k, g, b, l))
    out.append('.amdgcn_target "amdgcn-amd-amdhsa--gfx950"')
    out.append(".text")
    out += a.lines
    out.append('.section .rodata,"a"')
    for (k, nv, ns) in a.kernels:
        nv8 = (nv + 7)//8*8
        out.append(".p2align 6")
        out.append(".amdhsa_kernel %s" % k)
        out.append("  .amdhsa_next_free_vgpr %d" % nv8)
        out.append("  .amdhsa_next_free_sgpr %d" % ns)
        out.append("  .amdhsa_accum_offset %d" % nv8)
        out.append("  .amdhsa_group_segment_fixed_size 0")
        out.append("  .amdhsa_kernarg_size 112")
        out.append("  .amdhsa_user_sgpr_count 2")
        out.append("  .amdhsa_user_sgpr_kernarg_segment_ptr 1")
        out.append("  .amdhsa_system_sgpr_workgroup_id_x 1")
        out.append(".end_amdhsa_kernel")
    open(sys.argv[1], "w").write("\n".join(out) + "\n")
    import json
    json.dump(WS, open(sys.argv[1] + ".ws.json", "w"))

if __name__ == "__main__":
    main()
```

```python
import math, sys, os
EXP = os.environ.get('EXP', '')
NLG = int(os.environ.get('NLG', '4'))
WQ2 = int(os.environ.get('WQ2', '4'))
WQ3 = int(os.environ.get('WQ3', '4'))

S = 2048; D = 640; F = 1728; FH = 864
NAME = "interleave_layers__ssm_conv_h3__mixer_gmlp__prompt"

A_Q, A_K, A_V, A_SHK, A_SSMK, A_SSMD, B_X, B_WIN, B_WSP, B_BSP, B_WOUT, D_OUT, D_DBG, D_WS = [8*i for i in range(14)]

def al(x, a=4096): return (x + a - 1)//a*a
WS = {}
_off = 0
def ws_alloc(name, nbytes):
    global _off
    WS[name] = _off
    _off = al(_off + nbytes + 4096)
ws_alloc('Y', S*D*2)
ws_alloc('WINT', F*D*2)
ws_alloc('WOUTT', D*FH*2)
ws_alloc('X1', S*D*2)
ws_alloc('XN', S*D*2)
ws_alloc('Z', S*F*2)
ws_alloc('Z2T', FH*S*2)
ws_alloc('H', S*FH*2)
ws_alloc('X2', S*D*2)
ws_alloc('X3', S*D*2)
ws_alloc('KVR', D*64*80)
WS_TOTAL = _off

class Asm:
    def __init__(self):
        self.lines = []
        self.kernels = []
        self.lab = 0
    def __call__(self, s):
        self.lines.append("    " + s)
    def label(self, l):
        self.lines.append(l + ":")
    def newlabel(self, p="L"):
        self.lab += 1
        return "%s_%d" % (p, self.lab)
    def raw(self, s):
        self.lines.append(s)

def begin_kernel(a, name):
    a.raw(".p2align 8")
    a.raw(".type %s,@function" % name)
    a.raw("%s:" % name)

def end_kernel(a, name, nv, ns=102):
    a("s_endpgm")
    a.kernels.append((name, nv, ns))

def load_ptr(a, sdst, slot):
    a("s_load_dwordx2 s[%d:%d], s[0:1], %d" % (sdst, sdst+1, slot))

def srd_from(a, sd, sptr, off, nbytes):
    if off:
        a("s_add_u32 s%d, s%d, 0x%x" % (sd, sptr, off))
        a("s_addc_u32 s%d, s%d, 0" % (sd+1, sptr+1))
    else:
        a("s_mov_b32 s%d, s%d" % (sd, sptr))
        a("s_mov_b32 s%d, s%d" % (sd+1, sptr+1))
    a("s_mov_b32 s%d, 0x%x" % (sd+2, nbytes))
    a("s_mov_b32 s%d, 0x00020000" % (sd+3))

def wave_sum(a, vsrc, vt, s0):
    a("s_nop 1")
    a("v_add_f32_dpp v%d, v%d, v%d quad_perm:[1,0,3,2] row_mask:0xf bank_mask:0xf" % (vt, vsrc, vsrc))
    a("s_nop 1")
    a("v_add_f32_dpp v%d, v%d, v%d quad_perm:[2,3,0,1] row_mask:0xf bank_mask:0xf" % (vt, vt, vt))
    a("s_nop 1")
    a("v_add_f32_dpp v%d, v%d, v%d row_half_mirror row_mask:0xf bank_mask:0xf" % (vt, vt, vt))
    a("s_nop 1")
    a("v_add_f32_dpp v%d, v%d, v%d row_mirror row_mask:0xf bank_mask:0xf" % (vt, vt, vt))
    a("s_nop 1")
    for i in range(4):
        a("v_readlane_b32 s%d, v%d, %d" % (s0+i, vt, 16*i))
    a("s_nop 1")
    a("v_mov_b32 v%d, s%d" % (vt, s0))
    for i in range(1, 4):
        a("v_add_f32 v%d, s%d, v%d" % (vt, s0+i, vt))

def rnd2(a, vpk, va, vb):
    a("v_cvt_pk_bf16_f32 v%d, v%d, v%d" % (vpk, va, vb))
    a("v_lshlrev_b32 v%d, 16, v%d" % (va, vpk))
    a("v_and_b32 v%d, 0xffff0000, v%d" % (vb, vpk))

def unpack(a, vlo, vhi, vsrc):
    a("v_lshlrev_b32 v%d, 16, v%d" % (vlo, vsrc))
    a("v_and_b32 v%d, 0xffff0000, v%d" % (vhi, vsrc))

def layernorm_regs(a, xs, n, vt, vm, vr, vpk, s0, valid=None, nvalid_tail=None):
    ln_stats(a, xs, n, vt, vm, vr, vpk, s0, valid, nvalid_tail)
    for i in range(0, len(xs), 2):
        x0, x1 = xs[i], xs[i+1]
        a("v_sub_f32 v%d, v%d, v%d" % (x0, x0, vm))
        a("v_sub_f32 v%d, v%d, v%d" % (x1, x1, vm))
        rnd2(a, vpk, x0, x1)
        a("v_mul_f32 v%d, v%d, v%d" % (x0, x0, vr))
        a("v_mul_f32 v%d, v%d, v%d" % (x1, x1, vr))
        rnd2(a, vpk, x0, x1)


def wave_sum2(a, va, vb, s0):
    for pat in ("quad_perm:[1,0,3,2]", "quad_perm:[2,3,0,1]", "row_half_mirror", "row_mirror"):
        a("s_nop 0")
        a("v_add_f32_dpp v%d, v%d, v%d %s row_mask:0xf bank_mask:0xf" % (va, va, va, pat))
        a("v_add_f32_dpp v%d, v%d, v%d %s row_mask:0xf bank_mask:0xf" % (vb, vb, vb, pat))
    a("s_nop 0")
    for i in range(4):
        a("v_readlane_b32 s%d, v%d, %d" % (s0+i, va, 16*i))
    for i in range(4):
        a("v_readlane_b32 s%d, v%d, %d" % (s0+4+i, vb, 16*i))
    a("v_mov_b32 v%d, s%d" % (va, s0))
    a("v_mov_b32 v%d, s%d" % (vb, s0+4))
    for i in range(1, 4):
        a("v_add_f32 v%d, s%d, v%d" % (va, s0+i, va))
        a("v_add_f32 v%d, s%d, v%d" % (vb, s0+4+i, vb))

def ln_stats(a, xs, n, vt, vm, vr, vpk, s0, valid=None, nvalid_tail=None):
    a("v_add_f32 v%d, v%d, v%d" % (vm, xs[0], xs[1]))
    a("v_mul_f32 v%d, v%d, v%d" % (vr, xs[0], xs[0]))
    a("v_fmac_f32 v%d, v%d, v%d" % (vr, xs[1], xs[1]))
    for x in xs[2:]:
        a("v_add_f32 v%d, v%d, v%d" % (vm, vm, x))
        a("v_fmac_f32 v%d, v%d, v%d" % (vr, x, x))
    a("s_nop 0")
    wave_sum2(a, vm, vr, s0)
    a("v_mul_f32 v%d, 0x%08x, v%d" % (vm, f2u(1.0/n), vm))
    a("v_mul_f32 v%d, 0x%08x, v%d" % (vr, f2u(1.0/n), vr))
    a("v_fma_f32 v%d, -v%d, v%d, v%d" % (vr, vm, vm, vr))
    a("v_max_f32 v%d, 0, v%d" % (vr, vr))
    rnd2(a, vpk, vm, vr)
    a("v_add_f32 v%d, 0x%08x, v%d" % (vr, f2u(1e-5), vr))
    a("v_cvt_pk_bf16_f32 v%d, v%d, v%d" % (vpk, vr, vr))
    a("v_lshlrev_b32 v%d, 16, v%d" % (vr, vpk))
    a("v_sqrt_f32 v%d, v%d" % (vr, vr))
    a("s_nop 0")
    a("v_cvt_pk_bf16_f32 v%d, v%d, v%d" % (vpk, vr, vr))
    a("v_lshlrev_b32 v%d, 16, v%d" % (vr, vpk))
    a("v_rcp_f32 v%d, v%d" % (vr, vr))
    a("s_nop 0")

import struct
def f2u(f):
    return struct.unpack("<I", struct.pack("<f", f))[0]

def gen_e(a, name, src):
    srcspec, dstname = src
    begin_kernel(a, name)
    end = a.newlabel("Lend")
    a("s_cmp_ge_u32 s2, %d" % (S//16))
    a("s_cbranch_scc1 %s" % end)
    load_ptr(a, 4, D_WS)
    if srcspec[0] == 'in':
        load_ptr(a, 6, srcspec[1])
    a("s_waitcnt lgkmcnt(0)")
    if srcspec[0] == 'in':
        srd_from(a, 8, 6, 0, S*D*2)
    else:
        srd_from(a, 8, 4, WS[srcspec[1]], S*D*2)
    srd_from(a, 12, 4, WS['Y'], S*D*2)
    srd_from(a, 16, 4, WS[dstname], S*D*2)
    srd_from(a, 20, 4, WS['XN'], S*D*2)
    a("v_lshrrev_b32 v1, 6, v0")
    a("s_lshl_b32 s3, s2, 4")
    a("v_add_u32 v1, s3, v1")
    a("v_and_b32 v2, 63, v0")
    a("v_mul_u32_u24 v1, %d, v1" % (D*2))
    a("v_lshl_add_u32 v1, v2, 3, v1")
    a("v_cmp_gt_u32 vcc, 32, v2")
    a("v_cndmask_b32 v58, 0, 1.0, vcc")
    a("s_mov_b64 s[30:31], vcc")
    for r in (8, 9, 14, 15): a("v_mov_b32 v%d, 0" % r)
    a("v_lshrrev_b32 v3, 3, v0")
    a("v_and_b32 v59, 7, v0")
    a("v_lshlrev_b32 v60, 14, v3")
    a("v_lshl_add_u32 v60, v59, 4, v60")
    a("s_lshl_b32 s3, s2, 7")
    a("buffer_load_dwordx4 v[16:19], v60, s[12:15], s3 offen")
    a("v_cmp_gt_u32 vcc, 256, v0")
    a("s_and_saveexec_b64 s[28:29], vcc")
    a("v_add_u32 v60, 0x%x, v60" % (128*16384))
    a("buffer_load_dwordx4 v[44:47], v60, s[12:15], s3 offen")
    a("s_mov_b64 exec, -1")
    a("buffer_load_dwordx2 v[4:5], v1, s[8:11], 0 offen")
    a("buffer_load_dwordx2 v[6:7], v1, s[8:11], 0 offen offset:512")
    a("s_mov_b64 exec, s[30:31]")
    a("buffer_load_dwordx2 v[8:9], v1, s[8:11], 0 offen offset:1024")
    a("s_mov_b64 exec, -1")
    a("v_mul_u32_u24 v3, 144, v3")
    a("v_lshl_add_u32 v3, v59, 4, v3")
    a("s_waitcnt vmcnt(3)")
    a("ds_write_b128 v3, v[16:19]")
    a("s_mov_b64 exec, s[28:29]")
    a("v_cmp_gt_u32 vcc, 256, v0")
    a("s_and_saveexec_b64 s[28:29], vcc")
    a("ds_write_b128 v3, v[44:47] offset:%d" % (128*144))
    a("s_mov_b64 exec, -1")
    a("s_waitcnt lgkmcnt(0)")
    a("s_barrier")
    a("v_lshrrev_b32 v3, 6, v0")
    a("v_lshlrev_b32 v3, 3, v3")
    a("v_mul_u32_u24 v59, 144, v2")
    a("v_add_u32 v3, v3, v59")
    a("ds_read_b64 v[10:11], v3")
    a("ds_read_b64 v[12:13], v3 offset:%d" % (64*144))
    a("s_mov_b64 exec, s[30:31]")
    a("ds_read_b64 v[14:15], v3 offset:%d" % (128*144))
    a("s_mov_b64 exec, -1")
    X = list(range(20, 32)); L = list(range(32, 44)); Yv = list(range(44, 56))
    a("s_waitcnt vmcnt(0) lgkmcnt(0)")
    for i in range(6):
        unpack(a, X[2*i], X[2*i+1], 4+i)
        a("v_mov_b32 v%d, v%d" % (L[2*i], X[2*i]))
        a("v_mov_b32 v%d, v%d" % (L[2*i+1], X[2*i+1]))
    layernorm_regs(a, L, D, 61, 62, 63, 57, 32, valid=58, nvalid_tail=4)
    for i in range(6):
        unpack(a, Yv[2*i], Yv[2*i+1], 10+i)
    for i in range(0, 12, 2):
        a("v_mul_f32 v%d, v%d, v%d" % (L[i], L[i], Yv[i]))
        a("v_mul_f32 v%d, v%d, v%d" % (L[i+1], L[i+1], Yv[i+1]))
        rnd2(a, 57, L[i], L[i+1])
        a("v_add_f32 v%d, v%d, v%d" % (X[i], X[i], L[i]))
        a("v_add_f32 v%d, v%d, v%d" % (X[i+1], X[i+1], L[i+1]))
        rnd2(a, 4+i//2, X[i], X[i+1])
    a("buffer_store_dwordx2 v[4:5], v1, s[16:19], 0 offen")
    a("buffer_store_dwordx2 v[6:7], v1, s[16:19], 0 offen offset:512")
    a("s_mov_b64 exec, s[30:31]")
    a("buffer_store_dwordx2 v[8:9], v1, s[16:19], 0 offen offset:1024")
    a("s_mov_b64 exec, -1")
    layernorm_regs(a, X, D, 61, 62, 63, 57, 32, valid=58, nvalid_tail=4)
    for i in range(6):
        a("v_cvt_pk_bf16_f32 v%d, v%d, v%d" % (10+i, X[2*i], X[2*i+1]))
    a("buffer_store_dwordx2 v[10:11], v1, s[20:23], 0 offen")
    a("buffer_store_dwordx2 v[12:13], v1, s[20:23], 0 offen offset:512")
    a("s_mov_b64 exec, s[30:31]")
    a("buffer_store_dwordx2 v[14:15], v1, s[20:23], 0 offen offset:1024")
    a.label(end)
    end_kernel(a, name, 64, 40)

LN2_ROWS = 16
LN2_PITCH = 48
def gen_ln2(a, name):
    begin_kernel(a, name)
    end = a.newlabel("Lend")
    a("s_cmp_ge_u32 s2, %d" % (S//LN2_ROWS))
    a("s_cbranch_scc1 %s" % end)
    load_ptr(a, 4, D_WS)
    a("s_waitcnt lgkmcnt(0)")
    srd_from(a, 8, 4, WS['Z'], S*F*2)
    srd_from(a, 12, 4, WS['Z2T'], FH*S*2)
    a("v_and_b32 v2, 63, v0")
    a("v_lshrrev_b32 v3, 6, v0")
    a("v_cmp_gt_u32 vcc, 54, v2")
    a("v_cndmask_b32 v4, 0, 1.0, vcc")
    a("s_mov_b64 s[30:31], vcc")
    a("s_mul_i32 s3, s2, %d" % (16*F*2))
    a("s_add_u32 s3, s3, %d" % (FH*2))
    a("v_mul_u32_u24 v7, %d, v3" % (F*2))
    a("v_lshl_add_u32 v7, v2, 4, v7")
    X = list(range(24, 40))
    for i in range(8):
        a("v_mov_b32 v%d, 0" % (12+i))
    a("s_mov_b64 exec, s[30:31]")
    a("buffer_load_dwordx4 v[12:15], v7, s[8:11], s3 offen")
    a("buffer_load_dwordx4 v[16:19], v7, s[8:11], s3 offen offset:%d" % (54*16))
    a("s_mov_b64 exec, -1")
    a("v_lshlrev_b32 v8, 1, v0")
    PB = 48
    for r in range(16):
        if r and r % 1 == 0 and (r*F*2) > 4095 and r % 1 == 0:
            pass
        a("s_add_u32 s24, s3, %d" % (r*F*2))
        a("buffer_load_ushort v%d, v8, s[8:11], s24 offen" % (PB+r))
    a("s_waitcnt vmcnt(16)")
    for i in range(8):
        unpack(a, X[2*i], X[2*i+1], 12+i)
    ln_stats(a, X, FH, 40, 41, 42, 43, 32, valid=4)
    a("v_lshlrev_b32 v9, 3, v3")
    a("v_mov_b32 v44, v41"); a("v_mov_b32 v45, v42")
    a("ds_write_b64 v9, v[44:45]")
    a("s_waitcnt lgkmcnt(0)")
    a("s_barrier")
    a("v_cmp_gt_u32 vcc, %d, v0" % FH)
    a("s_and_saveexec_b64 s[28:29], vcc")
    a("s_cbranch_execz %s" % end)
    a("v_mov_b32 v9, 0")
    for i in range(8):
        a("ds_read_b128 v[%d:%d], v9 offset:%d" % (64+4*i, 67+4*i, 16*i))
    a("s_waitcnt vmcnt(0) lgkmcnt(0)")
    for r in range(0, 16, 2):
        x0, x1 = PB+r, PB+r+1
        a("v_lshlrev_b32 v%d, 16, v%d" % (x0, x0))
        a("v_lshlrev_b32 v%d, 16, v%d" % (x1, x1))
        a("v_sub_f32 v%d, v%d, v%d" % (x0, x0, 64+2*r))
        a("v_sub_f32 v%d, v%d, v%d" % (x1, x1, 64+2*r+2))
        rnd2(a, 43, x0, x1)
        a("v_mul_f32 v%d, v%d, v%d" % (x0, x0, 64+2*r+1))
        a("v_mul_f32 v%d, v%d, v%d" % (x1, x1, 64+2*r+3))
        a("v_cvt_pk_bf16_f32 v%d, v%d, v%d" % (24+r//2, x0, x1))
    a("v_lshlrev_b32 v12, 5, v0")
    a("s_mul_i32 s3, s2, %d" % (FH*32))
    a("buffer_store_dwordx4 v[24:27], v12, s[12:15], s3 offen")
    a("buffer_store_dwordx4 v[28:31], v12, s[12:15], s3 offen offset:16")
    a.label(end)
    end_kernel(a, name, 96, 40)

SB0 = [70]
def stamp(a, i):
    if 'stamp' in EXP:
        a("s_memtime s[%d:%d]" % (SB0[0]+2*i, SB0[0]+1+2*i))
        a("s_waitcnt lgkmcnt(0)")
def stamp_out(a, n, swave=44):
    if 'stamp' not in EXP: return
    a("s_load_dwordx2 s[64:65], s[0:1], %d" % D_DBG)
    a("s_waitcnt lgkmcnt(0)")
    a("s_mov_b32 s66, 256"); a("s_mov_b32 s67, 0x20000")
    l = a.newlabel("Lst")
    a("s_cmp_lg_u32 s2, 8")
    a("s_cbranch_scc1 %s" % l)
    a("s_cmp_lg_u32 s%d, 0" % swave)
    a("s_cbranch_scc1 %s" % l)
    a("v_mov_b32 v1, 0")
    for i in range(n):
        a("s_sub_u32 s63, s%d, s%d" % (SB0[0]+2*i, SB0[0]))
        a("v_mov_b32 v2, s63")
        a("buffer_store_dword v2, v1, s[64:67], 0 offen offset:%d" % (4*i))
    a.label(l)
def gen_gemm(a, name, Pd, Qd, K, TP, TQ, nP, nQ, epi, epi_args, NS=4, WPn=2, WQn=2, xcd=None, nL=4):
    nW = WPn*WQn
    begin_kernel(a, name)
    end = a.newlabel("Lend"); lload = a.newlabel("Lload")
    gp, gq = xcd
    assert gp*gq == 8 and nQ % gq == 0
    ppg = (nP + gp - 1)//gp
    qpg = nQ//gq
    nWG = 8*ppg*qpg
    NPF = 0
    lpfw = a.newlabel("Lpfw")
    a("s_cmp_ge_u32 s2, %d" % (nWG+NPF))
    a("s_cbranch_scc1 %s" % end)
    load_ptr(a, 4, D_WS)
    sl = 6
    ptrs = {}
    for d in (Pd, Qd):
        if d[0] == 'in':
            load_ptr(a, sl, d[1]); ptrs[d[1]] = sl; sl += 2
    for slot in epi_args.get('in_slots', []):
        load_ptr(a, sl, slot); ptrs[slot] = sl; sl += 2
    assert sl <= 16
    if NPF:
        a("s_cmp_lt_u32 s2, %d" % NPF)
        a("s_cbranch_scc1 %s" % lpfw)
        a("s_sub_u32 s2, s2, %d" % NPF)
    a("s_and_b32 s40, s2, 7")
    a("s_lshr_b32 s41, s2, 3")
    a("s_and_b32 s42, s40, %d" % (gp-1))
    a("s_lshr_b32 s43, s40, %d" % int(math.log2(gp)))
    a("s_mov_b32 s45, 0x%x" % ((1 << 32)//ppg + 1))
    a("s_mul_hi_u32 s46, s41, s45")
    a("s_mul_i32 s45, s46, %d" % ppg)
    a("s_sub_u32 s45, s41, s45")
    a("s_mul_i32 s42, s42, %d" % ppg)
    a("s_add_u32 s42, s42, s45")
    a("s_mul_i32 s43, s43, %d" % qpg)
    a("s_add_u32 s43, s43, s46")
    a("s_cmp_ge_u32 s42, %d" % nP)
    a("s_cbranch_scc1 %s" % end)
    a("s_mov_b32 s39, s42")
    a("s_mul_i32 s42, s42, %d" % TP)
    if epi_args.get('short_from') is not None:
        a("s_sub_u32 s38, s39, %d" % epi_args['short_from'])
        a("s_max_i32 s38, s38, 0")
        a("s_lshl_b32 s38, s38, 4")
        a("s_sub_u32 s42, s42, s38")
    a("s_mul_i32 s43, s43, %d" % TQ)
    a("v_lshrrev_b32 v1, 6, v0")
    a("s_nop 0")
    a("v_readfirstlane_b32 s44, v1")
    a("v_and_b32 v2, 63, v0")
    a("v_lshrrev_b32 v5, 4, v2")
    a("s_waitcnt lgkmcnt(0)")
    stamp(a, 0)
    SB = (TP+TQ)*128
    nsteps = (K + 63)//64
    lastpartial = (K % 64) != 0
    npro = min(NS-1, nsteps)
    lpf = a.newlabel("Lpf")
    a("s_cmp_ge_u32 s44, %d" % (nW+nL))
    a("s_cbranch_scc1 %s" % lpf)
    a("s_cmp_ge_u32 s44, %d" % nW)
    a("s_cbranch_scc1 %s" % lload)
    wp, wq = TP//WPn, TQ//WQn
    nPf, nQf = wp//16, wq//16
    nH = (NS+1)//2
    VA = 8
    def vaddr(isQ, kk, half): return VA + ((2 if isQ else 0) + kk)*nH + half
    a("v_and_b32 v3, 15, v2")
    a("v_lshrrev_b32 v4, 1, v3")
    a("v_and_b32 v4, 7, v4")
    a("v_xor_b32 v4, v4, v5")
    a("v_lshlrev_b32 v4, 4, v4")
    a("v_lshl_add_u32 v4, v3, 7, v4")
    a("s_and_b32 s45, s44, %d" % (WPn-1))
    a("s_lshr_b32 s46, s44, %d" % int(math.log2(WPn)))
    a("s_mul_i32 s47, s45, %d" % (wp*128))
    a("s_mul_i32 s48, s46, %d" % (wq*128))
    a("s_add_u32 s48, s48, %d" % (TP*128))
    for isQ in (0, 1):
        for kk in range(2):
            for half in range(nH):
                v = vaddr(isQ, kk, half)
                a("v_add_u32 v%d, s%d, v4" % (v, 48 if isQ else 47))
                if kk: a("v_xor_b32 v%d, 64, v%d" % (v, v))
                if half: a("v_add_u32 v%d, %d, v%d" % (v, 2*SB*half, v))
    assert SB + max(nPf, nQf)*2048 < 65536
    VF = (VA + 4*nH + 3)//4*4
    def vPf(kk, i): return VF + (kk*nPf + i)*4
    def vQf(kk, j): return VF + (2*nPf + kk*nQf + j)*4
    VACC = VF + 2*(nPf+nQf)*4
    def acc(i, j): return VACC + (i*nQf + j)*4
    VEND = VACC + nPf*nQf*4
    for r in range(VACC, VEND):
        a("v_mov_b32 v%d, 0" % r)
    def reads(step, kk):
        if 'noread' in EXP: return
        st = step % NS
        half = st//2; soff = (st % 2)*SB
        order = [('P', 0)] + [('Q', j) for j in range(nQf)] + [('P', i) for i in range(1, nPf)]
        for (t, i) in order:
            if t == 'P':
                a("ds_read_b128 v[%d:%d], v%d offset:%d" % (vPf(kk,i), vPf(kk,i)+3, vaddr(0,kk,half), soff + i*2048))
            else:
                a("ds_read_b128 v[%d:%d], v%d offset:%d" % (vQf(kk,i), vQf(kk,i)+3, vaddr(1,kk,half), soff + i*2048))
    def mfmas(kk):
        if 'nomfma' in EXP: return
        for i in range(nPf):
            for j in range(nQf):
                a("v_mfma_f32_16x16x32_bf16 v[%d:%d], v[%d:%d], v[%d:%d], v[%d:%d]" % (
                    acc(i,j), acc(i,j)+3, vPf(kk,i), vPf(kk,i)+3, vQf(kk,j), vQf(kk,j)+3, acc(i,j), acc(i,j)+3))
    nfr = nPf + nQf
    VPRE = VEND
    ctx = dict(a=a, acc=acc, nPf=nPf, nQf=nQf, wp=wp, wq=wq, VF=VF, VACC=VACC, ptrs=ptrs, VPRE=VPRE)
    a("v_and_b32 v3, 15, v2")
    a("s_mul_i32 s47, s46, %d" % wq)
    a("s_add_u32 s47, s47, s43")
    a("v_add_u32 v3, s47, v3")
    a("v_lshrrev_b32 v4, 4, v2")
    a("v_lshlrev_b32 v4, 2, v4")
    a("s_mul_i32 s47, s45, %d" % wp)
    a("s_add_u32 s47, s47, s42")
    a("v_add_u32 v4, s47, v4")
    n0 = len(a.lines)
    VEND += epi_args['pre'](ctx, epi_args)
    deferred = a.lines[n0:]; del a.lines[n0:]
    stamp(a, 1)
    a("s_barrier")
    stamp(a, 2)
    reads(0, 0)
    for k in range(nsteps):
        has2 = not (lastpartial and k == nsteps-1)
        if has2:
            reads(k, 1)
            a("s_waitcnt lgkmcnt(%d)" % nfr)
        else:
            a("s_waitcnt lgkmcnt(0)")
        mfmas(0)
        if k+1 < nsteps:
            a("s_waitcnt lgkmcnt(0)")
            a("s_barrier")
            reads(k+1, 0)
            if k == 2: a.lines += deferred
            if has2: mfmas(1)
        elif has2:
            a("s_waitcnt lgkmcnt(0)")
            mfmas(1)
    a("s_nop 15")
    stamp(a, 3)
    if 'noepi' not in EXP: epi(ctx, epi_args)
    stamp(a, 4)
    if 'stamp' in EXP: a("s_waitcnt vmcnt(0)")
    stamp(a, 5)
    stamp_out(a, 6)
    a("s_branch %s" % end)
    a.label(lload)
    def mk(sd, d):
        if d[0] == 'in': srd_from(a, sd, ptrs[d[1]], 0, d[3])
        else: srd_from(a, sd, 4, WS[d[1]], d[3])
    mk(16, Pd); mk(20, Qd)
    assert TP % 8 == 0 and TQ % 8 == 0
    nJ = (TP+TQ)//8
    nJP = TP//8
    VD = 8
    a("v_lshrrev_b32 v3, 3, v2")
    a("v_and_b32 v4, 7, v2")
    llabs = [a.newlabel("Lld") for _ in range(nL)]
    for l in range(1, nL):
        a("s_cmp_eq_u32 s44, %d" % (nW+l))
        a("s_cbranch_scc1 %s" % llabs[l])
    nI = 0
    for l in range(nL):
        a.label(llabs[l])
        Js = list(range(l, nJ, nL))
        nI = max(nI, len(Js))
        for idx, J in enumerate(Js):
            isP = J < nJP
            JJ = J if isP else J - nJP
            pitch = Pd[2] if isP else Qd[2]
            t0 = 42 if isP else 43
            a("v_add_u32 v6, %d, v5" % ((4*JJ) % 8))
            a("v_and_b32 v6, 7, v6")
            a("v_xor_b32 v6, v6, v4")
            a("v_add_u32 v7, s%d, v3" % t0)
            if JJ: a("v_add_u32 v7, %d, v7" % (8*JJ))
            if isP and epi_args.get('pblocked'):
                a("v_lshlrev_b32 v7, 5, v7")
                a("v_lshrrev_b32 v%d, 1, v6" % (VD+idx))
                a("v_mul_u32_u24 v%d, %d, v%d" % (VD+idx, FH*32, VD+idx))
                a("v_add_u32 v7, v7, v%d" % (VD+idx))
                a("v_and_b32 v6, 1, v6")
                a("v_lshl_add_u32 v%d, v6, 4, v7" % (VD+idx))
            else:
                a("s_mov_b32 s47, %d" % pitch)
                a("v_mul_lo_u32 v7, v7, s47")
                a("v_lshl_add_u32 v%d, v6, 4, v7" % (VD+idx))
        def dma_stage(step):
            st = step % NS
            a("s_mov_b32 s50, %d" % (step*128))
            a("s_mov_b32 s51, %d" % (step*4*FH*32))
            for idx, J in enumerate(Js):
                if 'nodma' in EXP: break
                isP = J < nJP
                a("s_mov_b32 m0, %d" % (st*SB + J*1024))
                a("s_nop 0")
                a("buffer_load_dwordx4 v%d, s[%d:%d], s%d offen lds" % (VD+idx, 16 if isP else 20, 19 if isP else 23, 51 if (isP and epi_args.get('pblocked')) else 50))
        n = len(Js)
        for st in range(npro): dma_stage(st)
        issued = npro
        assert n*(NS-1) <= 63
        a("s_waitcnt vmcnt(%d)" % (n*(issued-1)))
        a("s_barrier")
        for k in range(nsteps-1):
            a("s_waitcnt vmcnt(%d)" % (n*(issued-1-(k+1))))
            a("s_barrier")
            if issued < nsteps:
                dma_stage(issued); issued += 1
        a("s_branch %s" % end)
    if NPF:
        a.label(lpfw)
        a("v_cmp_gt_u32 vcc, 64, v0")
        a("s_cbranch_vccz %s" % end)
        a("s_waitcnt lgkmcnt(0)")
        mk(16, Pd); mk(20, Qd)
        a("s_and_b32 s40, s2, 7")
        a("s_lshr_b32 s41, s2, 3")
        a("s_and_b32 s42, s40, %d" % (gp-1))
        a("s_lshr_b32 s43, s40, %d" % int(math.log2(gp)))
        QR = qpg*TQ
        rpw = QR//32
        nq = (rpw + 7)//8
        a("v_lshrrev_b32 v3, 3, v0"); a("v_and_b32 v4, 7, v0")
        a("s_mul_i32 s45, s43, %d" % QR)
        a("s_mul_i32 s46, s41, %d" % rpw)
        a("s_add_u32 s45, s45, s46")
        for i in range(nq):
            a("v_add_u32 v5, s45, v3")
            if i: a("v_add_u32 v5, %d, v5" % (8*i))
            a("s_mov_b32 s47, %d" % Qd[2])
            a("v_mul_lo_u32 v5, v5, s47")
            a("v_lshl_add_u32 v%d, v4, 4, v5" % (8+i))
        PRr = epi_args['l2pf']
        nb1k = (PRr*32 + 1023)//1024
        tot = 4*nb1k
        npp = (tot + 31)//32
        a("s_mul_i32 s48, s42, %d" % (PRr*32))
        for i in range(npp):
            a("s_add_u32 s46, s41, %d" % (32*i))
            a("s_min_u32 s46, s46, %d" % (tot-1))
            a("s_mov_b32 s47, 0x%x" % ((1 << 32)//nb1k + 1))
            a("s_mul_hi_u32 s49, s46, s47")
            a("s_mul_i32 s47, s49, %d" % nb1k)
            a("s_sub_u32 s46, s46, s47")
            a("s_mul_i32 s49, s49, %d" % (FH*32))
            a("s_lshl_b32 s46, s46, 10")
            a("s_add_u32 s49, s49, s46")
            a("s_add_u32 s49, s49, s48")
            a("v_lshlrev_b32 v5, 4, v0")
            a("v_add_u32 v%d, s49, v5" % (8+nq+i))
        a("s_mov_b32 s50, 0"); a("s_mov_b32 s51, 0"); a("s_mov_b32 s52, %d" % nsteps)
        lp = a.newlabel("Lpl")
        a.label(lp)
        for i in range(nq):
            a("buffer_load_dwordx4 v[20:23], v%d, s[20:23], s50 offen" % (8+i))
        for i in range(npp):
            a("buffer_load_dwordx4 v[20:23], v%d, s[16:19], s51 offen" % (8+nq+i))
        a("s_waitcnt vmcnt(24)")
        a("s_add_u32 s50, s50, 128"); a("s_add_u32 s51, s51, %d" % (4*FH*32))
        a("s_sub_u32 s52, s52, 1"); a("s_cmp_lg_u32 s52, 0"); a("s_cbranch_scc1 %s" % lp)
        a("s_branch %s" % end)
    a.label(lpf)
    if epi_args.get('l2pf'):
        mk(16, Pd); mk(20, Qd)
        a("s_and_b32 s40, s2, 7")
        a("s_lshr_b32 s41, s2, 3")
        a("s_and_b32 s42, s40, %d" % (gp-1))
        a("s_lshr_b32 s43, s40, %d" % int(math.log2(gp)))
        NJX = ppg*qpg
        QR = qpg*TQ
        rpw = QR//NJX
        nq = (rpw + 7)//8
        a("v_lshrrev_b32 v3, 3, v2"); a("v_and_b32 v4, 7, v2")
        a("s_mul_i32 s45, s43, %d" % QR)
        a("s_mul_i32 s46, s41, %d" % rpw)
        a("s_add_u32 s45, s45, s46")
        for i in range(nq):
            a("v_add_u32 v5, s45, v3")
            if i: a("v_add_u32 v5, %d, v5" % (8*i))
            a("s_mov_b32 s47, %d" % Qd[2])
            a("v_mul_lo_u32 v5, v5, s47")
            a("v_lshl_add_u32 v%d, v4, 4, v5" % (8+i))
        PRr = epi_args['l2pf']
        nb1k = (PRr*32 + 1023)//1024
        tot = 4*nb1k
        npp = (tot + NJX - 1)//NJX
        a("s_mul_i32 s48, s42, %d" % (PRr*32))
        for i in range(npp):
            a("s_add_u32 s46, s41, %d" % (NJX*i))
            a("s_min_u32 s46, s46, %d" % (tot-1))
            a("s_mov_b32 s47, 0x%x" % ((1 << 32)//nb1k + 1))
            a("s_mul_hi_u32 s49, s46, s47")
            a("s_mul_i32 s47, s49, %d" % nb1k)
            a("s_sub_u32 s46, s46, s47")
            a("s_mul_i32 s49, s49, %d" % (FH*32))
            a("s_lshl_b32 s46, s46, 10")
            a("s_add_u32 s49, s49, s46")
            a("s_add_u32 s49, s49, s48")
            a("v_lshlrev_b32 v5, 4, v2")
            a("v_add_u32 v%d, s49, v5" % (8+nq+i))
        def pf_stage(step):
            a("s_mov_b32 s50, %d" % (step*128)); a("s_mov_b32 s51, %d" % (step*4*FH*32))
            for i in range(nq):
                a("buffer_load_dwordx4 v[20:23], v%d, s[20:23], s50 offen" % (8+i))
            for i in range(npp):
                a("buffer_load_dwordx4 v[20:23], v%d, s[16:19], s51 offen" % (8+nq+i))
        PD0 = int(os.environ.get('PD0', '8')); PR = int(os.environ.get('PRR', '2'))
        nxt = npro
        for _ in range(PD0):
            if nxt < nsteps: pf_stage(nxt); nxt += 1
        a("s_barrier")
        for k in range(nsteps-1):
            for _ in range(PR):
                if nxt < nsteps:
                    a("s_waitcnt vmcnt(48)")
                    pf_stage(nxt); nxt += 1
            a("s_barrier")
    a.label(end)
    end_kernel(a, name, max(VEND, VD+nI), 96)
    return (nWG+NPF, 64*(nW+nL+(1 if epi_args.get('l2pf') else 0)), NS*SB)

def pre_g1(c, args):
    a = c['a']
    srd_from(a, 24, 4, WS['Z'], S*F*2)
    a("v_mul_u32_u24 v5, %d, v3" % (F*2))
    a("v_lshl_add_u32 v5, v4, 1, v5")
    return 0

def epi_g1(c, args):
    a = c['a']
    T = c['VF']
    K0 = T; K1 = T+2; ONE = T+4
    a("v_mov_b32 v%d, 0x%08x" % (K0, f2u(-2.302208198))); a("v_mov_b32 v%d, 0x%08x" % (K0+1, f2u(-2.302208198)))
    a("v_mov_b32 v%d, 0x%08x" % (K1, f2u(-2.302208198*0.044715))); a("v_mov_b32 v%d, 0x%08x" % (K1+1, f2u(-2.302208198*0.044715)))
    a("v_mov_b32 v%d, 1.0" % ONE); a("v_mov_b32 v%d, 1.0" % (ONE+1))
    U = T+8
    for j in range(c['nQf']):
        for i in range(c['nPf']):
            r = c['acc'](i, j)
            rnd2(a, U+4, r, r+1); rnd2(a, U+4, r+2, r+3)
            for h in range(2):
                x = r+2*h; t = U+2*h
                a("v_pk_mul_f32 v[%d:%d], v[%d:%d], v[%d:%d]" % (t, t+1, x, x+1, x, x+1))
                a("v_pk_fma_f32 v[%d:%d], v[%d:%d], v[%d:%d], v[%d:%d]" % (t, t+1, t, t+1, K1, K1+1, K0, K0+1))
                a("v_pk_mul_f32 v[%d:%d], v[%d:%d], v[%d:%d]" % (t, t+1, t, t+1, x, x+1))
            for e in range(4):
                a("v_exp_f32 v%d, v%d" % (U+e, U+e))
            a("s_nop 0")
            for h in range(2):
                t = U+2*h
                a("v_pk_add_f32 v[%d:%d], v[%d:%d], v[%d:%d]" % (t, t+1, t, t+1, ONE, ONE+1))
            for e in range(4):
                a("v_rcp_f32 v%d, v%d" % (U+e, U+e))
            a("s_nop 0")
            for h in range(2):
                x = r+2*h; t = U+2*h
                a("v_pk_mul_f32 v[%d:%d], v[%d:%d], v[%d:%d]" % (x, x+1, x, x+1, t, t+1))
            a("v_cvt_pk_bf16_f32 v%d, v%d, v%d" % (r, r, r+1))
            a("v_cvt_pk_bf16_f32 v%d, v%d, v%d" % (r+1, r+2, r+3))
            a("buffer_store_dwordx2 v[%d:%d], v5, s[24:27], 0 offen offset:%d" % (r, r+1, i*32))
        a("v_add_u32 v5, %d, v5" % (16*F*2))

def pre_g2(c, args):
    a = c['a']
    srd_from(a, 24, 4, WS['Z'], S*F*2)
    srd_from(a, 28, 4, WS['H'], S*FH*2)
    srd_from(a, 32, c['ptrs'][B_BSP], 0, S*2)
    a("v_mul_u32_u24 v5, %d, v3" % (F*2))
    a("v_lshl_add_u32 v5, v4, 1, v5")
    a("v_mul_u32_u24 v6, %d, v3" % (FH*2))
    a("v_lshl_add_u32 v6, v4, 1, v6")
    a("v_lshlrev_b32 v7, 1, v3")
    T = c['VPRE']
    nPf, nQf = c['nPf'], c['nQf']
    for j in range(nQf):
        a("buffer_load_ushort v%d, v7, s[32:35], 0 offen offset:%d" % (T+j, 32*j))
    for j in range(nQf):
        for i in range(nPf):
            z = T+4+(j*nPf+i)*2
            a("buffer_load_dwordx2 v[%d:%d], v5, s[24:27], 0 offen offset:%d" % (z, z+1, i*32))
        a("v_add_u32 v5, %d, v5" % (16*F*2))
    return 4 + nPf*nQf*2

def epi_g2(c, args):
    a = c['a']
    T = c['VPRE']
    nPf, nQf = c['nPf'], c['nQf']
    a("s_waitcnt vmcnt(0)")
    U = c['VF']
    for j in range(nQf):
        a("v_lshlrev_b32 v%d, 16, v%d" % (T+j, T+j))
        for i in range(nPf):
            r = c['acc'](i, j); z = T+4+(j*nPf+i)*2
            rnd2(a, U, r, r+1); rnd2(a, U, r+2, r+3)
            for e in range(4):
                a("v_add_f32 v%d, v%d, v%d" % (r+e, r+e, T+j))
            rnd2(a, U, r, r+1); rnd2(a, U, r+2, r+3)
            unpack(a, U, U+1, z); unpack(a, U+2, U+3, z+1)
            for h in range(2):
                a("v_pk_mul_f32 v[%d:%d], v[%d:%d], v[%d:%d]" % (r+2*h, r+2*h+1, r+2*h, r+2*h+1, U+2*h, U+2*h+1))
            a("v_cvt_pk_bf16_f32 v%d, v%d, v%d" % (r, r, r+1))
            a("v_cvt_pk_bf16_f32 v%d, v%d, v%d" % (r+1, r+2, r+3))
            sk = None
            if args.get('short_from') is not None and i == nPf-1:
                sk = a.newlabel("Lsk")
                a("s_cmp_ge_u32 s39, %d" % args['short_from'])
                a("s_cbranch_scc1 %s" % sk)
            a("buffer_store_dwordx2 v[%d:%d], v6, s[28:31], 0 offen offset:%d" % (r, r+1, i*32))
            if sk: a.label(sk)
        a("v_add_u32 v6, %d, v6" % (16*FH*2))

def pre_g3(c, args):
    a = c['a']
    srd_from(a, 24, 4, WS[args['xin']], S*D*2)
    if args['out'] == 'dout':
        srd_from(a, 28, c['ptrs'][D_OUT], 0, S*D*2)
    else:
        srd_from(a, 28, 4, WS[args['out']], S*D*2)
    a("v_mul_u32_u24 v5, %d, v3" % (D*2))
    a("v_lshl_add_u32 v5, v4, 1, v5")
    a("v_mov_b32 v6, v5")
    T = c['VPRE']
    nPf, nQf = c['nPf'], c['nQf']
    for j in range(nQf):
        for i in range(nPf):
            z = T+(j*nPf+i)*2
            a("buffer_load_dwordx2 v[%d:%d], v5, s[24:27], 0 offen offset:%d" % (z, z+1, i*32))
        a("v_add_u32 v5, %d, v5" % (16*D*2))
    return nPf*nQf*2

def epi_g3(c, args):
    a = c['a']
    T = c['VPRE']
    nPf, nQf = c['nPf'], c['nQf']
    a("s_waitcnt vmcnt(0)")
    U = c['VF']
    for j in range(nQf):
        for i in range(nPf):
            r = c['acc'](i, j); z = T+(j*nPf+i)*2
            rnd2(a, U, r, r+1); rnd2(a, U, r+2, r+3)
            unpack(a, U, U+1, z); unpack(a, U+2, U+3, z+1)
            for h in range(2):
                a("v_pk_add_f32 v[%d:%d], v[%d:%d], v[%d:%d]" % (r+2*h, r+2*h+1, r+2*h, r+2*h+1, U+2*h, U+2*h+1))
            a("v_cvt_pk_bf16_f32 v%d, v%d, v%d" % (r, r, r+1))
            a("v_cvt_pk_bf16_f32 v%d, v%d, v%d" % (r+1, r+2, r+3))
            a("buffer_store_dwordx2 v[%d:%d], v6, s[28:31], 0 offen offset:%d" % (r, r+1, i*32))
        a("v_add_u32 v6, %d, v6" % (16*D*2))

NKV = S//32
NT_IN = (D//32)*(F//64)
NT_OUT = (FH//32)*(D//64)
COPYSZ = 4160
KVSZ = 96*80
KVIMG = 64*80
CHSZ = 8*COPYSZ + KVSZ
PR_ROWS = 16
def gen_prepa(a, name):
    begin_kernel(a, name)
    end = a.newlabel("Lend"); lw = a.newlabel("Lwarm")
    a("s_cmp_ge_u32 s2, %d" % (S//PR_ROWS + 128))
    a("s_cbranch_scc1 %s" % end)
    a("s_cmp_ge_u32 s2, %d" % (S//PR_ROWS))
    a("s_cbranch_scc1 %s" % lw)
    load_ptr(a, 4, D_WS)
    load_ptr(a, 6, A_K); load_ptr(a, 8, A_V); load_ptr(a, 10, A_SHK)
    a("s_waitcnt lgkmcnt(0)")
    srd_from(a, 16, 6, 0, S*D*2)
    srd_from(a, 20, 8, 0, S*D*2)
    srd_from(a, 24, 10, 0, D*8)
    srd_from(a, 28, 4, WS['KVR'], D*KVIMG)
    R = PR_ROWS
    a("s_mul_i32 s3, s2, %d" % (R*D*2))
    a("v_lshlrev_b32 v1, 2, v0")
    a("v_add_u32 v1, s3, v1")
    a("v_subrev_u32 v2, %d, v1" % (3*D*2))
    a("v_lshlrev_b32 v3, 4, v0")
    a("buffer_load_dwordx4 v[4:7], v3, s[24:27], 0 offen")
    KB = 16; VB = KB + R + 3
    def ld(dst, vbase, i, srd):
        if i % 3 == 0 and i:
            a("v_add_u32 v%d, %d, v%d" % (vbase, 3*1280, vbase))
        a("buffer_load_dword v%d, v%d, s[%d:%d], 0 offen offset:%d" % (dst, vbase, srd, srd+3, (i % 3)*1280))
    for i in range(R+3): ld(KB+i, 2, i, 16)
    for i in range(R): ld(VB+i, 1, i, 20)
    a("s_waitcnt vmcnt(0)")
    W = 60; K0 = 70; K1 = K0 + R + 3; O0 = K1 + R + 3; O1 = O0 + R
    for ch in range(2):
        for t in range(4):
            src = 4 + 2*ch + t//2
            if t % 2 == 0: a("v_lshlrev_b32 v%d, 16, v%d" % (W+4*ch+t, src))
            else: a("v_and_b32 v%d, 0xffff0000, v%d" % (W+4*ch+t, src))
    for i in range(R+3): unpack(a, K0+i, K1+i, KB+i)
    for r in range(R):
        for t in range(4):
            a("v_mul_f32 v8, v%d, v%d" % (W+3-t, K0+r+t))
            a("v_mul_f32 v9, v%d, v%d" % (W+4+3-t, K1+r+t))
            rnd2(a, 10, 8, 9)
            if t == 0:
                a("v_mov_b32 v%d, v8" % (O0+r)); a("v_mov_b32 v%d, v9" % (O1+r))
            else:
                a("v_add_f32 v%d, v%d, v8" % (O0+r, O0+r)); a("v_add_f32 v%d, v%d, v9" % (O1+r, O1+r))
                rnd2(a, 10, O0+r, O1+r)
        unpack(a, 8, 9, VB+r)
        a("v_mul_f32 v%d, v%d, v8" % (O0+r, O0+r)); a("v_mul_f32 v%d, v%d, v9" % (O1+r, O1+r))
    for ch in range(2):
        b = O0 if ch == 0 else O1
        for m in range(R//2):
            a("v_cvt_pk_bf16_f32 v%d, v%d, v%d" % (16+8*ch+m, b+R-1-2*m, b+R-2-2*m))
    a("s_lshr_b32 s3, s2, 1")
    a("s_mul_i32 s3, s3, %d" % (D*64))
    a("s_and_b32 s12, s2, 1")
    a("s_xor_b32 s12, s12, 1")
    a("s_lshl_b32 s12, s12, 5")
    a("s_add_u32 s3, s3, s12")
    a("v_lshlrev_b32 v3, 7, v0")
    a("v_add_u32 v3, s3, v3")
    for ch in range(2):
        for m in range(2):
            a("buffer_store_dwordx4 v[%d:%d], v3, s[28:31], 0 offen offset:%d" % (16+8*ch+4*m, 19+8*ch+4*m, 64*ch+16*m))
    a("s_branch %s" % end)
    a.label(lw)
    load_ptr(a, 4, A_SSMK); load_ptr(a, 6, B_WIN); load_ptr(a, 8, B_WOUT); load_ptr(a, 10, A_Q)
    a("s_waitcnt lgkmcnt(0)")
    srd_from(a, 16, 4, 0, D*S*2); srd_from(a, 20, 6, 0, D*F*2); srd_from(a, 24, 8, 0, FH*D*2); srd_from(a, 28, 10, 0, S*D*2)
    a("s_sub_u32 s3, s2, %d" % (S//PR_ROWS))
    a("s_mul_i32 s3, s3, %d" % (5*5120))
    a("v_lshlrev_b32 v1, 4, v0")
    for i in range(5):
        for sd in (16, 20, 24, 28):
            a("buffer_load_dwordx4 v[8:11], v1, s[%d:%d], s3 offen" % (sd, sd+3))
        a("s_add_u32 s3, s3, 5120")
    a.label(end)
    end_kernel(a, name, O1+R, 40)

NCH = 4
NTRW = 96
def gen_conv(a, name):
    begin_kernel(a, name)
    end = a.newlabel("Lend"); ltr = a.newlabel("Ltr")
    a("s_cmp_ge_u32 s2, %d" % (D//NCH + NTRW))
    a("s_cbranch_scc1 %s" % end)
    load_ptr(a, 4, D_WS)
    a("s_cmp_ge_u32 s2, %d" % (D//NCH))
    a("s_cbranch_scc1 %s" % ltr)
    load_ptr(a, 12, A_SSMK); load_ptr(a, 14, A_SSMD)
    a("s_waitcnt lgkmcnt(0)")
    srd_from(a, 16, 4, WS['KVR'], D*KVIMG)
    a("s_lshl_b32 s3, s2, 3")
    a("s_add_u32 s14, s14, s3"); a("s_addc_u32 s15, s15, 0")
    a("s_load_dwordx2 s[44:45], s[14:15], 0")
    srd_from(a, 24, 12, 0, D*S*2)
    srd_from(a, 28, 4, WS['Y'], S*D*2)
    a("v_lshrrev_b32 v1, 6, v0")
    a("s_nop 0")
    a("v_readfirstlane_b32 s46, v1")
    a("v_and_b32 v2, 63, v0")
    a("s_and_b32 s47, s46, 3")
    a("s_lshr_b32 s48, s46, 2")
    a("s_mul_i32 s49, s47, %d" % CHSZ)
    SB0[0] = 88
    stamp(a, 0)
    a("s_lshl_b32 s3, s2, 2")
    a("s_add_u32 s3, s3, s47")
    a("s_lshl_b32 s50, s3, 6")
    a("s_mul_i32 s51, s48, 3072")
    a("s_add_u32 s51, s51, s49")
    a("s_add_u32 s51, s51, %d" % (8*COPYSZ))
    a("s_mul_i32 s52, s48, 192")
    for pc in range(3):
        a("v_add_u32 v4, s52, v2")
        if pc: a("v_add_u32 v4, %d, v4" % (64*pc))
        a("v_mul_u32_u24 v5, 0x%x, v4" % 52429)
        a("v_lshrrev_b32 v5, 18, v5")
        a("v_mul_u32_u24 v6, 5, v5")
        a("v_sub_u32 v6, v4, v6")
        a("v_min_u32 v6, 3, v6")
        a("v_sub_u32 v5, 63, v5")
        a("v_mul_u32_u24 v5, %d, v5" % (D*64))
        a("v_lshl_add_u32 v%d, v6, 4, v5" % (90+pc))
    sk = a.newlabel("Lsk")
    for pc in range(3):
        if pc == 2:
            a("s_cmp_eq_u32 s48, 1")
            a("s_cbranch_scc1 %s" % sk)
        a("s_add_u32 m0, s51, %d" % (1024*pc))
        a("s_nop 0")
        a("buffer_load_dwordx4 v%d, s[16:19], s50 offen lds" % (90+pc))
    a.label(sk)
    for r in range(4): a("v_mov_b32 v%d, 0" % (84+r))
    for rnd in range(2):
        if rnd:
            a("v_cmp_gt_u32 vcc, 128, v0")
            a("s_and_saveexec_b64 s[58:59], vcc")
        a("v_add_u32 v4, %d, v0" % (512*rnd))
        a("v_mul_u32_u24 v5, 0x%x, v4" % 52429)
        a("v_lshrrev_b32 v5, 23, v5")
        a("v_mul_u32_u24 v6, 160, v5")
        a("v_sub_u32 v6, v4, v6")
        a("v_mul_u32_u24 v5, %d, v5" % CHSZ)
        a("v_lshl_add_u32 v5, v6, 4, v5")
        a("v_add_u32 v5, %d, v5" % (8*COPYSZ + 64*80))
        a("ds_write_b128 v5, v[84:87]")
        if rnd: a("s_mov_b64 exec, -1")
    a("s_lshl_b32 s3, s2, 14")
    for i in range(3):
        b = 12 + 8*i
        for r in range(8): a("v_mov_b32 v%d, 0" % (b+r))
        a("v_add_u32 v4, %d, v0" % (512*i))
        a("v_mul_u32_u24 v5, 0x%x, v4" % 64528)
        a("v_lshrrev_b32 v5, 24, v5")
        a("v_mul_u32_u24 v6, 260, v5")
        a("v_sub_u32 v6, v4, v6")
        a("v_mul_u32_u24 v7, %d, v5" % CHSZ)
        a("v_lshl_add_u32 v%d, v6, 4, v7" % (40+i))
        a("v_lshlrev_b32 v7, 12, v5")
        a("v_add_u32 v7, s3, v7")
        a("v_subrev_u32 v9, 4, v6")
        a("v_lshl_add_u32 v10, v9, 4, v7")
        a("v_cmp_gt_u32 s[60:61], 4, v5")
        a("v_cmp_gt_u32 vcc, 256, v9")
        a("s_and_b64 vcc, vcc, s[60:61]")
        a("s_and_saveexec_b64 s[62:63], vcc")
        a("buffer_load_dwordx4 v[%d:%d], v10, s[24:27], 0 offen" % (b, b+3))
        a("s_mov_b64 exec, -1")
        a("v_add_u32 v9, 1, v9")
        a("v_cmp_gt_u32 vcc, 256, v9")
        a("s_and_b64 vcc, vcc, s[60:61]")
        a("s_and_saveexec_b64 s[62:63], vcc")
        a("buffer_load_dwordx4 v[%d:%d], v10, s[24:27], 0 offen offset:16" % (b+4, b+7))
        a("s_mov_b64 exec, -1")
    stamp(a, 1)
    a("s_waitcnt vmcnt(0) lgkmcnt(0)")
    stamp(a, 2)
    for i in range(3):
        b = 12 + 8*i
        skip = a.newlabel("Lsk")
        if i == 2:
            a("v_cmp_gt_u32 vcc, 16, v0")
            a("s_and_saveexec_b64 s[58:59], vcc")
            a("s_cbranch_execz %s" % skip)
        for r in range(8):
            sh = 1 + r
            o = 44 + 4*(r % 2)
            for m in range(4):
                if sh % 2 == 0:
                    a("v_mov_b32 v%d, v%d" % (o+m, b + sh//2 + m))
                else:
                    lo = b + (sh-1)//2 + m
                    a("v_alignbit_b32 v%d, v%d, v%d, 16" % (o+m, lo+1, lo))
            a("ds_write_b128 v%d, v[%d:%d] offset:%d" % (40+i, o, o+3, r*COPYSZ))
        if i == 2:
            a.label(skip)
            a("s_mov_b64 exec, -1")
    a("s_waitcnt vmcnt(0) lgkmcnt(0)")
    stamp(a, 3)
    a("s_barrier")
    stamp(a, 4)
    a("v_and_b32 v3, 31, v2")
    a("v_lshrrev_b32 v4, 5, v2")
    a("v_and_b32 v5, 7, v3")
    a("v_mul_u32_u24 v5, %d, v5" % COPYSZ)
    a("v_and_b32 v6, 24, v3")
    a("v_lshl_add_u32 v6, v4, 3, v6")
    a("v_lshl_add_u32 v5, v6, 1, v5")
    a("v_add_u32 v5, s49, v5")
    a("s_lshl_b32 s52, s48, 5")
    a("v_add_u32 v7, s52, v3")
    a("v_sub_u32 v8, 63, v7")
    a("v_mul_u32_u24 v8, 80, v8")
    a("v_lshl_add_u32 v8, v4, 4, v8")
    a("v_add_u32 v8, s49, v8")
    a("v_add_u32 v8, %d, v8" % (8*COPYSZ))
    for r in range(16): a("v_mov_b32 v%d, 0" % (96+r))
    a("s_lshl_b32 s53, s48, 3")
    a("s_add_u32 s53, s53, 8")
    UN = 2
    def rd(setb, cbase):
        for c in range(UN):
            for kb in range(2):
                idx = c*2+kb
                a("ds_read_b128 v[%d:%d], v5 offset:%d" % (setb+idx*4, setb+idx*4+3, (cbase+c)*64 + kb*32))
                a("ds_read_b128 v[%d:%d], v8 offset:%d" % (setb+16+idx*4, setb+16+idx*4+3, (cbase+c)*80 + kb*32))
    def mm(setb):
        for idx in range(2*UN):
            a("v_mfma_f32_32x32x16_bf16 v[96:111], v[%d:%d], v[%d:%d], v[96:111]" % (setb+idx*4, setb+idx*4+3, setb+16+idx*4, setb+16+idx*4+3))
    rd(32, 0)
    loop = a.newlabel("Lconv")
    a.label(loop)
    rd(64, UN)
    a("s_waitcnt lgkmcnt(8)")
    mm(32)
    rd(32, 2*UN)
    a("s_waitcnt lgkmcnt(8)")
    mm(64)
    a("v_add_u32 v5, %d, v5" % (2*UN*64))
    a("v_add_u32 v8, %d, v8" % (2*UN*80))
    a("s_sub_u32 s53, s53, 1")
    a("s_cmp_lg_u32 s53, 0")
    a("s_cbranch_scc1 %s" % loop)
    a("s_waitcnt lgkmcnt(0)")
    a("s_nop 15")
    stamp(a, 5)
    a("v_sub_u32 v9, 63, v7")
    a("v_mul_u32_u24 v9, 80, v9")
    a("v_add_u32 v9, s49, v9")
    a("v_lshlrev_b32 v10, 3, v4")
    a("v_sub_u32 v9, v9, v10")
    a("v_add_u32 v9, %d, v9" % (8*COPYSZ + 2*28 - 48))
    for rq in range(4):
        a("ds_read_b64 v[%d:%d], v9 offset:%d" % (48+2*rq, 49+2*rq, 48 - 16*rq))
    a("s_lshr_b32 s54, s47, 1")
    a("s_cmp_eq_u32 s54, 0")
    a("s_cselect_b32 s54, s44, s45")
    a("s_lshl_b32 s55, s54, 16")
    a("s_and_b32 s54, s54, 0xffff0000")
    a("s_and_b32 s56, s47, 1")
    a("s_cmp_eq_u32 s56, 0")
    a("s_cselect_b32 s54, s55, s54")
    a("s_waitcnt lgkmcnt(0)")
    for rq in range(4):
        r = 96+4*rq
        unpack(a, 59, 58, 48+2*rq)
        unpack(a, 57, 56, 49+2*rq)
        for e in range(4):
            a("v_mul_f32 v%d, s54, v%d" % (56+e, 56+e))
        rnd2(a, 60, 56, 57); rnd2(a, 60, 58, 59)
        rnd2(a, 60, r, r+1); rnd2(a, 60, r+2, r+3)
        for e in range(4):
            a("v_add_f32 v%d, v%d, v%d" % (r+e, r+e, 56+e))
        a("v_cvt_pk_bf16_f32 v%d, v%d, v%d" % (r, r, r+1))
        a("v_cvt_pk_bf16_f32 v%d, v%d, v%d" % (r+1, r+2, r+3))
    a("s_barrier")
    a("v_lshlrev_b32 v11, 5, v7")
    a("v_lshl_add_u32 v11, v4, 2, v11")
    a("v_lshlrev_b32 v11, 3, v11")
    a("v_lshl_add_u32 v11, v7, 3, v11")
    a("s_lshl_b32 s56, s47, 1")
    a("v_add_u32 v11, s56, v11")
    for rq in range(4):
        r = 96+4*rq
        a("ds_write_b16 v11, v%d offset:%d" % (r, 64*rq))
        a("ds_write_b16_d16_hi v11, v%d offset:%d" % (r, 64*rq+8))
        a("ds_write_b16 v11, v%d offset:%d" % (r+1, 64*rq+16))
        a("ds_write_b16_d16_hi v11, v%d offset:%d" % (r+1, 64*rq+24))
    a("s_waitcnt lgkmcnt(0)")
    a("s_barrier")
    a("v_lshlrev_b32 v12, 3, v0")
    a("v_lshrrev_b32 v14, 5, v0")
    a("v_lshl_add_u32 v14, v14, 3, v12")
    for i in range(4):
        a("ds_read_b64 v[%d:%d], v14 offset:%d" % (16+2*i, 17+2*i, (4096+128)*i))
    a("s_lshl_b32 s3, s2, 14")
    a("v_add_u32 v13, s3, v12")
    for i in range(4):
        a("s_waitcnt lgkmcnt(%d)" % (3-i))
        a("buffer_store_dwordx2 v[%d:%d], v13, s[28:31], 0 offen" % (16+2*i, 17+2*i))
        a("v_add_u32 v13, 0x%x, v13" % 4096)
    if 'stamp' in EXP: a("s_waitcnt vmcnt(0)")
    stamp(a, 6)
    stamp_out(a, 7, 46)
    SB0[0] = 70
    a("s_branch %s" % end)
    a.label(ltr)
    load_ptr(a, 6, B_WIN); load_ptr(a, 8, B_WOUT)
    a("s_waitcnt lgkmcnt(0)")
    srd_from(a, 16, 6, 0, D*F*2)
    srd_from(a, 20, 4, WS['WINT'], D*F*2)
    srd_from(a, 24, 8, 0, D*FH*2)
    srd_from(a, 28, 4, WS['WOUTT'], D*FH*2)
    a("v_lshrrev_b32 v20, 8, v0")
    a("v_and_b32 v21, 255, v0")
    a("v_lshrrev_b32 v1, 3, v21")
    a("v_and_b32 v2, 7, v21")
    a("v_mul_u32_u24 v4, 640, v2")
    a("v_lshl_add_u32 v4, v1, 1, v4")
    a("v_mul_u32_u24 v22, 5120, v20")
    a("v_add_u32 v4, v4, v22")
    a("v_lshrrev_b32 v5, 2, v21")
    a("v_and_b32 v6, 3, v21")
    a("v_mul_u32_u24 v7, 80, v5")
    a("v_lshl_add_u32 v7, v6, 4, v7")
    a("v_add_u32 v7, v7, v22")
    a("s_sub_u32 s3, s2, %d" % (D//NCH))
    a("s_lshl_b32 s3, s3, 1")
    a("v_add_u32 v23, s3, v20")
    NT = NT_IN + NT_OUT
    NIT = (NT + 2*NTRW - 1)//(2*NTRW)
    for it in range(NIT):
        m_in = 40 + 4*it; m_out = 42 + 4*it
        a("v_cmp_gt_u32 vcc, %d, v23" % NT_IN)
        a("s_mov_b64 s[80:81], vcc")
        a("v_cmp_gt_u32 vcc, %d, v23" % NT)
        a("s_mov_b64 s[82:83], vcc")
        a("v_subrev_u32 v24, %d, v23" % NT_IN)
        a("v_cndmask_b32 v24, v24, v23, s[80:81]")
        a("v_mul_u32_u24 v25, 0x%x, v24" % ((1 << 20)//27 + 1)); a("v_lshrrev_b32 v25, 20, v25")
        a("v_mul_u32_u24 v26, 0x%x, v24" % ((1 << 20)//10 + 1)); a("v_lshrrev_b32 v26, 20, v26")
        a("v_cndmask_b32 v25, v26, v25, s[80:81]")
        a("v_mov_b32 v26, 10"); a("v_cndmask_b32 v26, v26, 27, s[80:81]")
        a("v_mul_u32_u24 v26, v26, v25"); a("v_sub_u32 v26, v24, v26")
        a("v_mov_b32 v27, %d" % (D*2)); a("v_mov_b32 v28, %d" % (F*2)); a("v_cndmask_b32 v27, v27, v28, s[80:81]")
        a("v_mov_b32 v28, %d" % (FH*2)); a("v_mov_b32 v29, %d" % (D*2)); a("v_cndmask_b32 v28, v28, v29, s[80:81]")
        a("v_lshl_add_u32 v29, v25, 5, v1")
        a("v_mul_lo_u32 v29, v29, v27")
        a("v_lshl_add_u32 v29, v2, 4, v29")
        a("v_lshl_add_u32 v29, v26, 7, v29")
        vo = 32 + it
        a("v_lshl_add_u32 v%d, v26, 6, v5" % vo)
        a("v_mul_lo_u32 v%d, v%d, v28" % (vo, vo))
        a("v_lshl_add_u32 v%d, v6, 4, v%d" % (vo, vo))
        a("v_lshl_add_u32 v%d, v25, 6, v%d" % (vo, vo))
        a("s_and_b64 s[%d:%d], s[80:81], s[82:83]" % (m_in, m_in+1))
        a("s_andn2_b64 s[%d:%d], s[82:83], s[80:81]" % (m_out, m_out+1))
        vd = 40 + 4*it
        a("s_mov_b64 exec, s[%d:%d]" % (m_in, m_in+1))
        a("buffer_load_dwordx4 v[%d:%d], v29, s[16:19], 0 offen" % (vd, vd+3))
        a("s_mov_b64 exec, s[%d:%d]" % (m_out, m_out+1))
        a("buffer_load_dwordx4 v[%d:%d], v29, s[24:27], 0 offen" % (vd, vd+3))
        a("s_mov_b64 exec, -1")
        a("v_add_u32 v23, %d, v23" % (2*NTRW))
    a("s_waitcnt vmcnt(0)")
    for it in range(NIT):
        vd = 40 + 4*it
        for e in range(8):
            if e % 2 == 0: a("ds_write_b16 v4, v%d offset:%d" % (vd+e//2, e*80 + it*10240))
            else: a("ds_write_b16_d16_hi v4, v%d offset:%d" % (vd+e//2, e*80 + it*10240))
    a("s_waitcnt lgkmcnt(0)")
    a("s_barrier")
    for it in range(NIT):
        vd = 40 + 4*it
        a("ds_read_b128 v[%d:%d], v7 offset:%d" % (vd, vd+3, it*10240))
    for it in range(NIT):
        vd = 40 + 4*it; vo = 32 + it
        m_in = 40 + 4*it; m_out = 42 + 4*it
        a("s_waitcnt lgkmcnt(%d)" % (NIT-1-it))
        a("s_mov_b64 exec, s[%d:%d]" % (m_in, m_in+1))
        a("buffer_store_dwordx4 v[%d:%d], v%d, s[20:23], 0 offen" % (vd, vd+3, vo))
        a("s_mov_b64 exec, s[%d:%d]" % (m_out, m_out+1))
        a("buffer_store_dwordx4 v[%d:%d], v%d, s[28:31], 0 offen" % (vd, vd+3, vo))
        a("s_mov_b64 exec, -1")
    if 'nowarm' not in EXP:
        load_ptr(a, 6, B_WSP)
        a("s_waitcnt lgkmcnt(0)")
        srd_from(a, 16, 6, 0, S*S*2)
        a("s_sub_u32 s3, s2, %d" % (D//NCH))
        a("s_mul_i32 s3, s3, %d" % (11*8192))
        a("v_lshlrev_b32 v1, 4, v0")
        for i in range(11):
            a("buffer_load_dwordx4 v[8:11], v1, s[16:19], s3 offen")
            a("s_add_u32 s3, s3, 8192")
    a.label(end)
    end_kernel(a, name, 176, 102)

def main():
    a = Asm()
    launches = []
    gen_prepa(a, "prepa_kernel"); launches.append(("prepa_kernel", S//PR_ROWS + 128, 320, 0))
    gen_conv(a, "conv_kernel"); launches.append(("conv_kernel", D//NCH + NTRW, 512, NCH*CHSZ))
    gen_e(a, "e1_kernel", (('in', A_Q), 'X1'))
    gen_e(a, "e2_kernel", (('ws', 'X2'), 'X3'))
    l1 = gen_gemm(a, "g1_kernel", ('ws', 'WINT', D*2, F*D*2), ('ws', 'XN', D*2, S*D*2), D, 192, 128, F//192, S//128, epi_g1, {'pre': pre_g1}, NS=4, WPn=4, WQn=2, xcd=(2,4))
    gen_ln2(a, "ln2_kernel")
    l2 = gen_gemm(a, "g2_kernel", ('ws', 'Z2T', S*2, FH*S*2+4096), ('in', B_WSP, S*2, S*S*2), S, 112, 64, 8, S//64, epi_g2, {'in_slots': [B_BSP], 'pblocked': True, 'pre': pre_g2, 'short_from': 6, 'l2pf': (448 if 'l2' in EXP else 0)}, NS=6, WPn=1, WQn=WQ2, nL=NLG, xcd=(2,4))
    l3 = gen_gemm(a, "g3a_kernel", ('ws', 'WOUTT', FH*2, D*FH*2+4096), ('ws', 'H', FH*2, S*FH*2+4096), FH, 80, 64, D//80, S//64, epi_g3, {'xin': 'X1', 'out': 'X2', 'pre': pre_g3}, NS=7, WPn=1, WQn=WQ3, nL=NLG, xcd=(2,4))
    gen_gemm(a, "g3b_kernel", ('ws', 'WOUTT', FH*2, D*FH*2+4096), ('ws', 'H', FH*2, S*FH*2+4096), FH, 80, 64, D//80, S//64, epi_g3, {'xin': 'X3', 'out': 'dout', 'in_slots': [D_OUT], 'pre': pre_g3}, NS=7, WPn=1, WQn=WQ3, nL=NLG, xcd=(2,4))
    for lay in range(2):
        launches.append(("e%d_kernel" % (lay+1), S//16, 1024, 160*144))
        launches.append(("g1_kernel",) + l1)
        launches.append(("ln2_kernel", S//LN2_ROWS, 1024, 256))
        launches.append(("g2_kernel",) + l2)
        launches.append(("g3a_kernel" if lay == 0 else "g3b_kernel",) + l3)
    nl = int(sys.argv[2]) if len(sys.argv) > 2 else len(launches)
    out = []
    for (k, g, b, l) in launches[:nl]:
        out.append("; @launch kernel=%s grid=(%d,1,1) block=(%d,1,1) lds=%d" % (k, g, b, l))
    out.append('.amdgcn_target "amdgcn-amd-amdhsa--gfx950"')
    out.append(".text")
    out += a.lines
    out.append('.section .rodata,"a"')
    for (k, nv, ns) in a.kernels:
        nv8 = (nv + 7)//8*8
        out.append(".p2align 6")
        out.append(".amdhsa_kernel %s" % k)
        out.append("  .amdhsa_next_free_vgpr %d" % nv8)
        out.append("  .amdhsa_next_free_sgpr %d" % ns)
        out.append("  .amdhsa_accum_offset %d" % nv8)
        out.append("  .amdhsa_group_segment_fixed_size 0")
        out.append("  .amdhsa_kernarg_size 112")
        out.append("  .amdhsa_user_sgpr_count 2")
        out.append("  .amdhsa_user_sgpr_kernarg_segment_ptr 1")
        out.append("  .amdhsa_system_sgpr_workgroup_id_x 1")
        out.append(".end_amdhsa_kernel")
    open(sys.argv[1], "w").write("\n".join(out) + "\n")
    import json
    json.dump(WS, open(sys.argv[1] + ".ws.json", "w"))

if __name__ == "__main__":
    main()
```

```python
import math, sys, os
EXP = os.environ.get('EXP', '')
NLG = int(os.environ.get('NLG', '4'))
WQ2 = int(os.environ.get('WQ2', '4'))
WQ3 = int(os.environ.get('WQ3', '4'))

S = 2048; D = 640; F = 1728; FH = 864
NAME = "interleave_layers__ssm_conv_h3__mixer_gmlp__prompt"

A_Q, A_K, A_V, A_SHK, A_SSMK, A_SSMD, B_X, B_WIN, B_WSP, B_BSP, B_WOUT, D_OUT, D_DBG, D_WS = [8*i for i in range(14)]

def al(x, a=4096): return (x + a - 1)//a*a
WS = {}
_off = 0
def ws_alloc(name, nbytes):
    global _off
    WS[name] = _off
    _off = al(_off + nbytes + 4096)
ws_alloc('Y', S*D*2)
ws_alloc('WINT', F*D*2)
ws_alloc('WOUTT', D*FH*2)
ws_alloc('X1', S*D*2)
ws_alloc('XN', S*D*2)
ws_alloc('Z', S*F*2)
ws_alloc('Z2T', FH*S*2)
ws_alloc('H', S*FH*2)
ws_alloc('X2', S*D*2)
ws_alloc('X3', S*D*2)
ws_alloc('KVR', D*64*80)
WS_TOTAL = _off

class Asm:
    def __init__(self):
        self.lines = []
        self.kernels = []
        self.lab = 0
    def __call__(self, s):
        self.lines.append("    " + s)
    def label(self, l):
        self.lines.append(l + ":")
    def newlabel(self, p="L"):
        self.lab += 1
        return "%s_%d" % (p, self.lab)
    def raw(self, s):
        self.lines.append(s)

def begin_kernel(a, name):
    a.raw(".p2align 8")
    a.raw(".type %s,@function" % name)
    a.raw("%s:" % name)

def end_kernel(a, name, nv, ns=102):
    a("s_endpgm")
    a.kernels.append((name, nv, ns))

def load_ptr(a, sdst, slot):
    a("s_load_dwordx2 s[%d:%d], s[0:1], %d" % (sdst, sdst+1, slot))

def srd_from(a, sd, sptr, off, nbytes):
    if off:
        a("s_add_u32 s%d, s%d, 0x%x" % (sd, sptr, off))
        a("s_addc_u32 s%d, s%d, 0" % (sd+1, sptr+1))
    else:
        a("s_mov_b32 s%d, s%d" % (sd, sptr))
        a("s_mov_b32 s%d, s%d" % (sd+1, sptr+1))
    a("s_mov_b32 s%d, 0x%x" % (sd+2, nbytes))
    a("s_mov_b32 s%d, 0x00020000" % (sd+3))

def wave_sum(a, vsrc, vt, s0):
    a("s_nop 1")
    a("v_add_f32_dpp v%d, v%d, v%d quad_perm:[1,0,3,2] row_mask:0xf bank_mask:0xf" % (vt, vsrc, vsrc))
    a("s_nop 1")
    a("v_add_f32_dpp v%d, v%d, v%d quad_perm:[2,3,0,1] row_mask:0xf bank_mask:0xf" % (vt, vt, vt))
    a("s_nop 1")
    a("v_add_f32_dpp v%d, v%d, v%d row_half_mirror row_mask:0xf bank_mask:0xf" % (vt, vt, vt))
    a("s_nop 1")
    a("v_add_f32_dpp v%d, v%d, v%d row_mirror row_mask:0xf bank_mask:0xf" % (vt, vt, vt))
    a("s_nop 1")
    for i in range(4):
        a("v_readlane_b32 s%d, v%d, %d" % (s0+i, vt, 16*i))
    a("s_nop 1")
    a("v_mov_b32 v%d, s%d" % (vt, s0))
    for i in range(1, 4):
        a("v_add_f32 v%d, s%d, v%d" % (vt, s0+i, vt))

def rnd2(a, vpk, va, vb):
    a("v_cvt_pk_bf16_f32 v%d, v%d, v%d" % (vpk, va, vb))
    a("v_lshlrev_b32 v%d, 16, v%d" % (va, vpk))
    a("v_and_b32 v%d, 0xffff0000, v%d" % (vb, vpk))

def unpack(a, vlo, vhi, vsrc):
    a("v_lshlrev_b32 v%d, 16, v%d" % (vlo, vsrc))
    a("v_and_b32 v%d, 0xffff0000, v%d" % (vhi, vsrc))

def layernorm_regs(a, xs, n, vt, vm, vr, vpk, s0, valid=None, nvalid_tail=None):
    ln_stats(a, xs, n, vt, vm, vr, vpk, s0, valid, nvalid_tail)
    for i in range(0, len(xs), 2):
        x0, x1 = xs[i], xs[i+1]
        a("v_sub_f32 v%d, v%d, v%d" % (x0, x0, vm))
        a("v_sub_f32 v%d, v%d, v%d" % (x1, x1, vm))
        rnd2(a, vpk, x0, x1)
        a("v_mul_f32 v%d, v%d, v%d" % (x0, x0, vr))
        a("v_mul_f32 v%d, v%d, v%d" % (x1, x1, vr))
        rnd2(a, vpk, x0, x1)


def wave_sum2(a, va, vb, s0):
    for pat in ("quad_perm:[1,0,3,2]", "quad_perm:[2,3,0,1]", "row_half_mirror", "row_mirror"):
        a("s_nop 0")
        a("v_add_f32_dpp v%d, v%d, v%d %s row_mask:0xf bank_mask:0xf" % (va, va, va, pat))
        a("v_add_f32_dpp v%d, v%d, v%d %s row_mask:0xf bank_mask:0xf" % (vb, vb, vb, pat))
    a("s_nop 0")
    for i in range(4):
        a("v_readlane_b32 s%d, v%d, %d" % (s0+i, va, 16*i))
    for i in range(4):
        a("v_readlane_b32 s%d, v%d, %d" % (s0+4+i, vb, 16*i))
    a("v_mov_b32 v%d, s%d" % (va, s0))
    a("v_mov_b32 v%d, s%d" % (vb, s0+4))
    for i in range(1, 4):
        a("v_add_f32 v%d, s%d, v%d" % (va, s0+i, va))
        a("v_add_f32 v%d, s%d, v%d" % (vb, s0+4+i, vb))

def ln_stats(a, xs, n, vt, vm, vr, vpk, s0, valid=None, nvalid_tail=None):
    a("v_add_f32 v%d, v%d, v%d" % (vm, xs[0], xs[1]))
    a("v_mul_f32 v%d, v%d, v%d" % (vr, xs[0], xs[0]))
    a("v_fmac_f32 v%d, v%d, v%d" % (vr, xs[1], xs[1]))
    for x in xs[2:]:
        a("v_add_f32 v%d, v%d, v%d" % (vm, vm, x))
        a("v_fmac_f32 v%d, v%d, v%d" % (vr, x, x))
    a("s_nop 0")
    wave_sum2(a, vm, vr, s0)
    a("v_mul_f32 v%d, 0x%08x, v%d" % (vm, f2u(1.0/n), vm))
    a("v_mul_f32 v%d, 0x%08x, v%d" % (vr, f2u(1.0/n), vr))
    a("v_fma_f32 v%d, -v%d, v%d, v%d" % (vr, vm, vm, vr))
    a("v_max_f32 v%d, 0, v%d" % (vr, vr))
    rnd2(a, vpk, vm, vr)
    a("v_add_f32 v%d, 0x%08x, v%d" % (vr, f2u(1e-5), vr))
    a("v_cvt_pk_bf16_f32 v%d, v%d, v%d" % (vpk, vr, vr))
    a("v_lshlrev_b32 v%d, 16, v%d" % (vr, vpk))
    a("v_sqrt_f32 v%d, v%d" % (vr, vr))
    a("s_nop 0")
    a("v_cvt_pk_bf16_f32 v%d, v%d, v%d" % (vpk, vr, vr))
    a("v_lshlrev_b32 v%d, 16, v%d" % (vr, vpk))
    a("v_rcp_f32 v%d, v%d" % (vr, vr))
    a("s_nop 0")

import struct
def f2u(f):
    return struct.unpack("<I", struct.pack("<f", f))[0]

def gen_e(a, name, src):
    srcspec, dstname = src
    begin_kernel(a, name)
    end = a.newlabel("Lend")
    a("s_cmp_ge_u32 s2, %d" % (S//16))
    a("s_cbranch_scc1 %s" % end)
    load_ptr(a, 4, D_WS)
    if srcspec[0] == 'in':
        load_ptr(a, 6, srcspec[1])
    a("s_waitcnt lgkmcnt(0)")
    if srcspec[0] == 'in':
        srd_from(a, 8, 6, 0, S*D*2)
    else:
        srd_from(a, 8, 4, WS[srcspec[1]], S*D*2)
    srd_from(a, 12, 4, WS['Y'], S*D*2)
    srd_from(a, 16, 4, WS[dstname], S*D*2)
    srd_from(a, 20, 4, WS['XN'], S*D*2)
    a("v_lshrrev_b32 v1, 6, v0")
    a("s_lshl_b32 s3, s2, 4")
    a("v_add_u32 v1, s3, v1")
    a("v_and_b32 v2, 63, v0")
    a("v_mul_u32_u24 v1, %d, v1" % (D*2))
    a("v_lshl_add_u32 v1, v2, 3, v1")
    a("v_cmp_gt_u32 vcc, 32, v2")
    a("v_cndmask_b32 v58, 0, 1.0, vcc")
    a("s_mov_b64 s[30:31], vcc")
    for r in (8, 9, 14, 15): a("v_mov_b32 v%d, 0" % r)
    a("v_lshrrev_b32 v3, 3, v0")
    a("v_and_b32 v59, 7, v0")
    a("v_lshlrev_b32 v60, 14, v3")
    a("v_lshl_add_u32 v60, v59, 4, v60")
    a("s_lshl_b32 s3, s2, 7")
    a("buffer_load_dwordx4 v[16:19], v60, s[12:15], s3 offen")
    a("v_cmp_gt_u32 vcc, 256, v0")
    a("s_and_saveexec_b64 s[28:29], vcc")
    a("v_add_u32 v60, 0x%x, v60" % (128*16384))
    a("buffer_load_dwordx4 v[44:47], v60, s[12:15], s3 offen")
    a("s_mov_b64 exec, -1")
    a("buffer_load_dwordx2 v[4:5], v1, s[8:11], 0 offen")
    a("buffer_load_dwordx2 v[6:7], v1, s[8:11], 0 offen offset:512")
    a("s_mov_b64 exec, s[30:31]")
    a("buffer_load_dwordx2 v[8:9], v1, s[8:11], 0 offen offset:1024")
    a("s_mov_b64 exec, -1")
    a("v_mul_u32_u24 v3, 144, v3")
    a("v_lshl_add_u32 v3, v59, 4, v3")
    a("s_waitcnt vmcnt(3)")
    a("ds_write_b128 v3, v[16:19]")
    a("s_mov_b64 exec, s[28:29]")
    a("v_cmp_gt_u32 vcc, 256, v0")
    a("s_and_saveexec_b64 s[28:29], vcc")
    a("ds_write_b128 v3, v[44:47] offset:%d" % (128*144))
    a("s_mov_b64 exec, -1")
    a("s_waitcnt lgkmcnt(0)")
    a("s_barrier")
    a("v_lshrrev_b32 v3, 6, v0")
    a("v_lshlrev_b32 v3, 3, v3")
    a("v_mul_u32_u24 v59, 144, v2")
    a("v_add_u32 v3, v3, v59")
    a("ds_read_b64 v[10:11], v3")
    a("ds_read_b64 v[12:13], v3 offset:%d" % (64*144))
    a("s_mov_b64 exec, s[30:31]")
    a("ds_read_b64 v[14:15], v3 offset:%d" % (128*144))
    a("s_mov_b64 exec, -1")
    X = list(range(20, 32)); L = list(range(32, 44)); Yv = list(range(44, 56))
    a("s_waitcnt vmcnt(0) lgkmcnt(0)")
    for i in range(6):
        unpack(a, X[2*i], X[2*i+1], 4+i)
        a("v_mov_b32 v%d, v%d" % (L[2*i], X[2*i]))
        a("v_mov_b32 v%d, v%d" % (L[2*i+1], X[2*i+1]))
    layernorm_regs(a, L, D, 61, 62, 63, 57, 32, valid=58, nvalid_tail=4)
    for i in range(6):
        unpack(a, Yv[2*i], Yv[2*i+1], 10+i)
    for i in range(0, 12, 2):
        a("v_mul_f32 v%d, v%d, v%d" % (L[i], L[i], Yv[i]))
        a("v_mul_f32 v%d, v%d, v%d" % (L[i+1], L[i+1], Yv[i+1]))
        rnd2(a, 57, L[i], L[i+1])
        a("v_add_f32 v%d, v%d, v%d" % (X[i], X[i], L[i]))
        a("v_add_f32 v%d, v%d, v%d" % (X[i+1], X[i+1], L[i+1]))
        rnd2(a, 4+i//2, X[i], X[i+1])
    a("buffer_store_dwordx2 v[4:5], v1, s[16:19], 0 offen")
    a("buffer_store_dwordx2 v[6:7], v1, s[16:19], 0 offen offset:512")
    a("s_mov_b64 exec, s[30:31]")
    a("buffer_store_dwordx2 v[8:9], v1, s[16:19], 0 offen offset:1024")
    a("s_mov_b64 exec, -1")
    layernorm_regs(a, X, D, 61, 62, 63, 57, 32, valid=58, nvalid_tail=4)
    for i in range(6):
        a("v_cvt_pk_bf16_f32 v%d, v%d, v%d" % (10+i, X[2*i], X[2*i+1]))
    a("buffer_store_dwordx2 v[10:11], v1, s[20:23], 0 offen")
    a("buffer_store_dwordx2 v[12:13], v1, s[20:23], 0 offen offset:512")
    a("s_mov_b64 exec, s[30:31]")
    a("buffer_store_dwordx2 v[14:15], v1, s[20:23], 0 offen offset:1024")
    a.label(end)
    end_kernel(a, name, 64, 40)

LN2_ROWS = 16
LN2_PITCH = 48
def gen_ln2(a, name):
    begin_kernel(a, name)
    end = a.newlabel("Lend")
    a("s_cmp_ge_u32 s2, %d" % (S//LN2_ROWS))
    a("s_cbranch_scc1 %s" % end)
    load_ptr(a, 4, D_WS)
    a("s_waitcnt lgkmcnt(0)")
    srd_from(a, 8, 4, WS['Z'], S*F*2)
    srd_from(a, 12, 4, WS['Z2T'], FH*S*2)
    a("v_and_b32 v2, 63, v0")
    a("v_lshrrev_b32 v3, 6, v0")
    a("v_cmp_gt_u32 vcc, 54, v2")
    a("v_cndmask_b32 v4, 0, 1.0, vcc")
    a("s_mov_b64 s[30:31], vcc")
    a("s_mul_i32 s3, s2, %d" % (16*F*2))
    a("s_add_u32 s3, s3, %d" % (FH*2))
    a("v_mul_u32_u24 v7, %d, v3" % (F*2))
    a("v_lshl_add_u32 v7, v2, 4, v7")
    X = list(range(24, 40))
    for i in range(8):
        a("v_mov_b32 v%d, 0" % (12+i))
    a("s_mov_b64 exec, s[30:31]")
    a("buffer_load_dwordx4 v[12:15], v7, s[8:11], s3 offen")
    a("buffer_load_dwordx4 v[16:19], v7, s[8:11], s3 offen offset:%d" % (54*16))
    a("s_mov_b64 exec, -1")
    a("v_lshlrev_b32 v8, 1, v0")
    PB = 48
    for r in range(16):
        if r and r % 1 == 0 and (r*F*2) > 4095 and r % 1 == 0:
            pass
        a("s_add_u32 s24, s3, %d" % (r*F*2))
        a("buffer_load_ushort v%d, v8, s[8:11], s24 offen" % (PB+r))
    a("s_waitcnt vmcnt(16)")
    for i in range(8):
        unpack(a, X[2*i], X[2*i+1], 12+i)
    ln_stats(a, X, FH, 40, 41, 42, 43, 32, valid=4)
    a("v_lshlrev_b32 v9, 3, v3")
    a("v_mov_b32 v44, v41"); a("v_mov_b32 v45, v42")
    a("ds_write_b64 v9, v[44:45]")
    a("s_waitcnt lgkmcnt(0)")
    a("s_barrier")
    a("v_cmp_gt_u32 vcc, %d, v0" % FH)
    a("s_and_saveexec_b64 s[28:29], vcc")
    a("s_cbranch_execz %s" % end)
    a("v_mov_b32 v9, 0")
    for i in range(8):
        a("ds_read_b128 v[%d:%d], v9 offset:%d" % (64+4*i, 67+4*i, 16*i))
    a("s_waitcnt vmcnt(0) lgkmcnt(0)")
    for r in range(0, 16, 2):
        x0, x1 = PB+r, PB+r+1
        a("v_lshlrev_b32 v%d, 16, v%d" % (x0, x0))
        a("v_lshlrev_b32 v%d, 16, v%d" % (x1, x1))
        a("v_sub_f32 v%d, v%d, v%d" % (x0, x0, 64+2*r))
        a("v_sub_f32 v%d, v%d, v%d" % (x1, x1, 64+2*r+2))
        rnd2(a, 43, x0, x1)
        a("v_mul_f32 v%d, v%d, v%d" % (x0, x0, 64+2*r+1))
        a("v_mul_f32 v%d, v%d, v%d" % (x1, x1, 64+2*r+3))
        a("v_cvt_pk_bf16_f32 v%d, v%d, v%d" % (24+r//2, x0, x1))
    a("v_lshlrev_b32 v12, 5, v0")
    a("s_mul_i32 s3, s2, %d" % (FH*32))
    a("buffer_store_dwordx4 v[24:27], v12, s[12:15], s3 offen")
    a("buffer_store_dwordx4 v[28:31], v12, s[12:15], s3 offen offset:16")
    a.label(end)
    end_kernel(a, name, 96, 40)

SB0 = [70]
def stamp(a, i):
    if 'stamp' in EXP:
        a("s_memtime s[%d:%d]" % (SB0[0]+2*i, SB0[0]+1+2*i))
        a("s_waitcnt lgkmcnt(0)")
def stamp_out(a, n, swave=44):
    if 'stamp' not in EXP: return
    a("s_load_dwordx2 s[64:65], s[0:1], %d" % D_DBG)
    a("s_waitcnt lgkmcnt(0)")
    a("s_mov_b32 s66, 256"); a("s_mov_b32 s67, 0x20000")
    l = a.newlabel("Lst")
    a("s_cmp_lg_u32 s2, 8")
    a("s_cbranch_scc1 %s" % l)
    a("s_cmp_lg_u32 s%d, 0" % swave)
    a("s_cbranch_scc1 %s" % l)
    a("v_mov_b32 v1, 0")
    for i in range(n):
        a("s_sub_u32 s63, s%d, s%d" % (SB0[0]+2*i, SB0[0]))
        a("v_mov_b32 v2, s63")
        a("buffer_store_dword v2, v1, s[64:67], 0 offen offset:%d" % (4*i))
    a.label(l)
def gen_gemm(a, name, Pd, Qd, K, TP, TQ, nP, nQ, epi, epi_args, NS=4, WPn=2, WQn=2, xcd=None, nL=4):
    nW = WPn*WQn
    begin_kernel(a, name)
    end = a.newlabel("Lend"); lload = a.newlabel("Lload")
    gp, gq = xcd
    assert gp*gq == 8 and nQ % gq == 0
    ppg = (nP + gp - 1)//gp
    qpg = nQ//gq
    nWG = 8*ppg*qpg
    NPF = 0
    lpfw = a.newlabel("Lpfw")
    a("s_cmp_ge_u32 s2, %d" % (nWG+NPF))
    a("s_cbranch_scc1 %s" % end)
    load_ptr(a, 4, D_WS)
    sl = 6
    ptrs = {}
    for d in (Pd, Qd):
        if d[0] == 'in':
            load_ptr(a, sl, d[1]); ptrs[d[1]] = sl; sl += 2
    for slot in epi_args.get('in_slots', []):
        load_ptr(a, sl, slot); ptrs[slot] = sl; sl += 2
    assert sl <= 16
    if NPF:
        a("s_cmp_lt_u32 s2, %d" % NPF)
        a("s_cbranch_scc1 %s" % lpfw)
        a("s_sub_u32 s2, s2, %d" % NPF)
    a("s_and_b32 s40, s2, 7")
    a("s_lshr_b32 s41, s2, 3")
    a("s_and_b32 s42, s40, %d" % (gp-1))
    a("s_lshr_b32 s43, s40, %d" % int(math.log2(gp)))
    a("s_mov_b32 s45, 0x%x" % ((1 << 32)//ppg + 1))
    a("s_mul_hi_u32 s46, s41, s45")
    a("s_mul_i32 s45, s46, %d" % ppg)
    a("s_sub_u32 s45, s41, s45")
    a("s_mul_i32 s42, s42, %d" % ppg)
    a("s_add_u32 s42, s42, s45")
    a("s_mul_i32 s43, s43, %d" % qpg)
    a("s_add_u32 s43, s43, s46")
    a("s_cmp_ge_u32 s42, %d" % nP)
    a("s_cbranch_scc1 %s" % end)
    a("s_mov_b32 s39, s42")
    a("s_mul_i32 s42, s42, %d" % TP)
    if epi_args.get('short_from') is not None:
        if epi_args.get('halves'):
            a("s_lshr_b32 s37, s39, 3")
            a("s_and_b32 s39, s39, 7")
            a("s_mul_i32 s42, s39, %d" % TP)
            a("s_mul_i32 s37, s37, %d" % FH)
            a("s_add_u32 s42, s42, s37")
        a("s_sub_u32 s38, s39, %d" % epi_args['short_from'])
        a("s_max_i32 s38, s38, 0")
        a("s_lshl_b32 s38, s38, 4")
        a("s_sub_u32 s42, s42, s38")
    a("s_mul_i32 s43, s43, %d" % TQ)
    a("v_lshrrev_b32 v1, 6, v0")
    a("s_nop 0")
    a("v_readfirstlane_b32 s44, v1")
    a("v_and_b32 v2, 63, v0")
    a("v_lshrrev_b32 v5, 4, v2")
    a("s_waitcnt lgkmcnt(0)")
    stamp(a, 0)
    SB = (TP+TQ)*128
    nsteps = (K + 63)//64
    lastpartial = (K % 64) != 0
    npro = min(NS-1, nsteps)
    lpf = a.newlabel("Lpf")
    a("s_cmp_ge_u32 s44, %d" % (nW+nL))
    a("s_cbranch_scc1 %s" % lpf)
    a("s_cmp_ge_u32 s44, %d" % nW)
    a("s_cbranch_scc1 %s" % lload)
    wp, wq = TP//WPn, TQ//WQn
    nPf, nQf = wp//16, wq//16
    nH = (NS+1)//2
    VA = 8
    def vaddr(isQ, kk, half): return VA + ((2 if isQ else 0) + kk)*nH + half
    a("v_and_b32 v3, 15, v2")
    a("v_lshrrev_b32 v4, 1, v3")
    a("v_and_b32 v4, 7, v4")
    a("v_xor_b32 v4, v4, v5")
    a("v_lshlrev_b32 v4, 4, v4")
    a("v_lshl_add_u32 v4, v3, 7, v4")
    a("s_and_b32 s45, s44, %d" % (WPn-1))
    a("s_lshr_b32 s46, s44, %d" % int(math.log2(WPn)))
    a("s_mul_i32 s47, s45, %d" % (wp*128))
    a("s_mul_i32 s48, s46, %d" % (wq*128))
    a("s_add_u32 s48, s48, %d" % (TP*128))
    for isQ in (0, 1):
        for kk in range(2):
            for half in range(nH):
                v = vaddr(isQ, kk, half)
                a("v_add_u32 v%d, s%d, v4" % (v, 48 if isQ else 47))
                if kk: a("v_xor_b32 v%d, 64, v%d" % (v, v))
                if half: a("v_add_u32 v%d, %d, v%d" % (v, 2*SB*half, v))
    assert SB + max(nPf, nQf)*2048 < 65536
    VF = (VA + 4*nH + 3)//4*4
    def vPf(kk, i): return VF + (kk*nPf + i)*4
    def vQf(kk, j): return VF + (2*nPf + kk*nQf + j)*4
    VACC = VF + 2*(nPf+nQf)*4
    def acc(i, j): return VACC + (i*nQf + j)*4
    VEND = VACC + nPf*nQf*4
    for r in range(VACC, VEND):
        a("v_mov_b32 v%d, 0" % r)
    def reads(step, kk):
        if 'noread' in EXP: return
        st = step % NS
        half = st//2; soff = (st % 2)*SB
        order = [('P', 0)] + [('Q', j) for j in range(nQf)] + [('P', i) for i in range(1, nPf)]
        for (t, i) in order:
            if t == 'P':
                a("ds_read_b128 v[%d:%d], v%d offset:%d" % (vPf(kk,i), vPf(kk,i)+3, vaddr(0,kk,half), soff + i*2048))
            else:
                a("ds_read_b128 v[%d:%d], v%d offset:%d" % (vQf(kk,i), vQf(kk,i)+3, vaddr(1,kk,half), soff + i*2048))
    def mfmas(kk):
        if 'nomfma' in EXP: return
        for i in range(nPf):
            for j in range(nQf):
                a("v_mfma_f32_16x16x32_bf16 v[%d:%d], v[%d:%d], v[%d:%d], v[%d:%d]" % (
                    acc(i,j), acc(i,j)+3, vPf(kk,i), vPf(kk,i)+3, vQf(kk,j), vQf(kk,j)+3, acc(i,j), acc(i,j)+3))
    nfr = nPf + nQf
    VPRE = VEND
    ctx = dict(a=a, acc=acc, nPf=nPf, nQf=nQf, wp=wp, wq=wq, VF=VF, VACC=VACC, ptrs=ptrs, VPRE=VPRE)
    a("v_and_b32 v3, 15, v2")
    a("s_mul_i32 s47, s46, %d" % wq)
    a("s_add_u32 s47, s47, s43")
    a("v_add_u32 v3, s47, v3")
    a("v_lshrrev_b32 v4, 4, v2")
    a("v_lshlrev_b32 v4, 2, v4")
    a("s_mul_i32 s47, s45, %d" % wp)
    a("s_add_u32 s47, s47, s42")
    a("v_add_u32 v4, s47, v4")
    n0 = len(a.lines)
    VEND += epi_args['pre'](ctx, epi_args)
    deferred = a.lines[n0:]; del a.lines[n0:]
    stamp(a, 1)
    a("s_barrier")
    stamp(a, 2)
    reads(0, 0)
    for k in range(nsteps):
        has2 = not (lastpartial and k == nsteps-1)
        if has2:
            reads(k, 1)
            a("s_waitcnt lgkmcnt(%d)" % nfr)
        else:
            a("s_waitcnt lgkmcnt(0)")
        mfmas(0)
        if k+1 < nsteps:
            a("s_waitcnt lgkmcnt(0)")
            a("s_barrier")
            reads(k+1, 0)
            if k == 2: a.lines += deferred
            if has2: mfmas(1)
        elif has2:
            a("s_waitcnt lgkmcnt(0)")
            mfmas(1)
    a("s_nop 15")
    stamp(a, 3)
    if 'noepi' not in EXP: epi(ctx, epi_args)
    stamp(a, 4)
    if 'stamp' in EXP: a("s_waitcnt vmcnt(0)")
    stamp(a, 5)
    stamp_out(a, 6)
    a("s_branch %s" % end)
    a.label(lload)
    def mk(sd, d):
        if d[0] == 'in': srd_from(a, sd, ptrs[d[1]], 0, d[3])
        else: srd_from(a, sd, 4, WS[d[1]], d[3])
    mk(16, Pd); mk(20, Qd)
    assert TP % 8 == 0 and TQ % 8 == 0
    nJ = (TP+TQ)//8
    nJP = TP//8
    VD = 8
    a("v_lshrrev_b32 v3, 3, v2")
    a("v_and_b32 v4, 7, v2")
    llabs = [a.newlabel("Lld") for _ in range(nL)]
    for l in range(1, nL):
        a("s_cmp_eq_u32 s44, %d" % (nW+l))
        a("s_cbranch_scc1 %s" % llabs[l])
    nI = 0
    for l in range(nL):
        a.label(llabs[l])
        Js = list(range(l, nJ, nL))
        nI = max(nI, len(Js))
        for idx, J in enumerate(Js):
            isP = J < nJP
            JJ = J if isP else J - nJP
            pitch = Pd[2] if isP else Qd[2]
            t0 = 42 if isP else 43
            a("v_add_u32 v6, %d, v5" % ((4*JJ) % 8))
            a("v_and_b32 v6, 7, v6")
            a("v_xor_b32 v6, v6, v4")
            a("v_add_u32 v7, s%d, v3" % t0)
            if JJ: a("v_add_u32 v7, %d, v7" % (8*JJ))
            if isP and epi_args.get('pblocked'):
                a("v_lshlrev_b32 v7, 5, v7")
                a("v_lshrrev_b32 v%d, 1, v6" % (VD+idx))
                a("v_mul_u32_u24 v%d, %d, v%d" % (VD+idx, FH*32, VD+idx))
                a("v_add_u32 v7, v7, v%d" % (VD+idx))
                a("v_and_b32 v6, 1, v6")
                a("v_lshl_add_u32 v%d, v6, 4, v7" % (VD+idx))
            else:
                a("s_mov_b32 s47, %d" % pitch)
                a("v_mul_lo_u32 v7, v7, s47")
                a("v_lshl_add_u32 v%d, v6, 4, v7" % (VD+idx))
        def dma_stage(step):
            st = step % NS
            a("s_mov_b32 s50, %d" % (step*128))
            a("s_mov_b32 s51, %d" % (step*4*FH*32))
            for idx, J in enumerate(Js):
                if 'nodma' in EXP: break
                isP = J < nJP
                a("s_mov_b32 m0, %d" % (st*SB + J*1024))
                a("s_nop 0")
                a("buffer_load_dwordx4 v%d, s[%d:%d], s%d offen lds" % (VD+idx, 16 if isP else 20, 19 if isP else 23, 51 if (isP and epi_args.get('pblocked')) else 50))
        n = len(Js)
        for st in range(npro): dma_stage(st)
        issued = npro
        assert n*(NS-1) <= 63
        a("s_waitcnt vmcnt(%d)" % (n*(issued-1)))
        a("s_barrier")
        for k in range(nsteps-1):
            a("s_waitcnt vmcnt(%d)" % (n*(issued-1-(k+1))))
            a("s_barrier")
            if issued < nsteps:
                dma_stage(issued); issued += 1
        a("s_branch %s" % end)
    if NPF:
        a.label(lpfw)
        a("v_cmp_gt_u32 vcc, 64, v0")
        a("s_cbranch_vccz %s" % end)
        a("s_waitcnt lgkmcnt(0)")
        mk(16, Pd); mk(20, Qd)
        a("s_and_b32 s40, s2, 7")
        a("s_lshr_b32 s41, s2, 3")
        a("s_and_b32 s42, s40, %d" % (gp-1))
        a("s_lshr_b32 s43, s40, %d" % int(math.log2(gp)))
        QR = qpg*TQ
        rpw = QR//32
        nq = (rpw + 7)//8
        a("v_lshrrev_b32 v3, 3, v0"); a("v_and_b32 v4, 7, v0")
        a("s_mul_i32 s45, s43, %d" % QR)
        a("s_mul_i32 s46, s41, %d" % rpw)
        a("s_add_u32 s45, s45, s46")
        for i in range(nq):
            a("v_add_u32 v5, s45, v3")
            if i: a("v_add_u32 v5, %d, v5" % (8*i))
            a("s_mov_b32 s47, %d" % Qd[2])
            a("v_mul_lo_u32 v5, v5, s47")
            a("v_lshl_add_u32 v%d, v4, 4, v5" % (8+i))
        PRr = epi_args['l2pf']
        nb1k = (PRr*32 + 1023)//1024
        tot = 4*nb1k
        npp = (tot + 31)//32
        a("s_mul_i32 s48, s42, %d" % (PRr*32))
        for i in range(npp):
            a("s_add_u32 s46, s41, %d" % (32*i))
            a("s_min_u32 s46, s46, %d" % (tot-1))
            a("s_mov_b32 s47, 0x%x" % ((1 << 32)//nb1k + 1))
            a("s_mul_hi_u32 s49, s46, s47")
            a("s_mul_i32 s47, s49, %d" % nb1k)
            a("s_sub_u32 s46, s46, s47")
            a("s_mul_i32 s49, s49, %d" % (FH*32))
            a("s_lshl_b32 s46, s46, 10")
            a("s_add_u32 s49, s49, s46")
            a("s_add_u32 s49, s49, s48")
            a("v_lshlrev_b32 v5, 4, v0")
            a("v_add_u32 v%d, s49, v5" % (8+nq+i))
        a("s_mov_b32 s50, 0"); a("s_mov_b32 s51, 0"); a("s_mov_b32 s52, %d" % nsteps)
        lp = a.newlabel("Lpl")
        a.label(lp)
        for i in range(nq):
            a("buffer_load_dwordx4 v[20:23], v%d, s[20:23], s50 offen" % (8+i))
        for i in range(npp):
            a("buffer_load_dwordx4 v[20:23], v%d, s[16:19], s51 offen" % (8+nq+i))
        a("s_waitcnt vmcnt(24)")
        a("s_add_u32 s50, s50, 128"); a("s_add_u32 s51, s51, %d" % (4*FH*32))
        a("s_sub_u32 s52, s52, 1"); a("s_cmp_lg_u32 s52, 0"); a("s_cbranch_scc1 %s" % lp)
        a("s_branch %s" % end)
    a.label(lpf)
    if epi_args.get('l2pf'):
        mk(16, Pd); mk(20, Qd)
        a("s_and_b32 s40, s2, 7")
        a("s_lshr_b32 s41, s2, 3")
        a("s_and_b32 s42, s40, %d" % (gp-1))
        a("s_lshr_b32 s43, s40, %d" % int(math.log2(gp)))
        NJX = ppg*qpg
        QR = qpg*TQ
        rpw = QR//NJX
        nq = (rpw + 7)//8
        a("v_lshrrev_b32 v3, 3, v2"); a("v_and_b32 v4, 7, v2")
        a("s_mul_i32 s45, s43, %d" % QR)
        a("s_mul_i32 s46, s41, %d" % rpw)
        a("s_add_u32 s45, s45, s46")
        for i in range(nq):
            a("v_add_u32 v5, s45, v3")
            if i: a("v_add_u32 v5, %d, v5" % (8*i))
            a("s_mov_b32 s47, %d" % Qd[2])
            a("v_mul_lo_u32 v5, v5, s47")
            a("v_lshl_add_u32 v%d, v4, 4, v5" % (8+i))
        PRr = epi_args['l2pf']
        nb1k = (PRr*32 + 1023)//1024
        tot = 4*nb1k
        npp = (tot + NJX - 1)//NJX
        a("s_mul_i32 s48, s42, %d" % (PRr*32))
        for i in range(npp):
            a("s_add_u32 s46, s41, %d" % (NJX*i))
            a("s_min_u32 s46, s46, %d" % (tot-1))
            a("s_mov_b32 s47, 0x%x" % ((1 << 32)//nb1k + 1))
            a("s_mul_hi_u32 s49, s46, s47")
            a("s_mul_i32 s47, s49, %d" % nb1k)
            a("s_sub_u32 s46, s46, s47")
            a("s_mul_i32 s49, s49, %d" % (FH*32))
            a("s_lshl_b32 s46, s46, 10")
            a("s_add_u32 s49, s49, s46")
            a("s_add_u32 s49, s49, s48")
            a("v_lshlrev_b32 v5, 4, v2")
            a("v_add_u32 v%d, s49, v5" % (8+nq+i))
        def pf_stage(step):
            a("s_mov_b32 s50, %d" % (step*128)); a("s_mov_b32 s51, %d" % (step*4*FH*32))
            for i in range(nq):
                a("buffer_load_dwordx4 v[20:23], v%d, s[20:23], s50 offen" % (8+i))
            for i in range(npp):
                a("buffer_load_dwordx4 v[20:23], v%d, s[16:19], s51 offen" % (8+nq+i))
        PD0 = int(os.environ.get('PD0', '8')); PR = int(os.environ.get('PRR', '2'))
        nxt = npro
        for _ in range(PD0):
            if nxt < nsteps: pf_stage(nxt); nxt += 1
        a("s_barrier")
        for k in range(nsteps-1):
            for _ in range(PR):
                if nxt < nsteps:
                    a("s_waitcnt vmcnt(48)")
                    pf_stage(nxt); nxt += 1
            a("s_barrier")
    a.label(end)
    end_kernel(a, name, max(VEND, VD+nI), 96)
    return (nWG+NPF, 64*(nW+nL+(1 if epi_args.get('l2pf') else 0)), NS*SB)

def pre_g1(c, args):
    a = c['a']
    srd_from(a, 24, 4, WS['Z'], S*F*2)
    a("v_mul_u32_u24 v5, %d, v3" % (F*2))
    a("v_lshl_add_u32 v5, v4, 1, v5")
    return 0

def epi_g1(c, args):
    a = c['a']
    T = c['VF']
    K0 = T; K1 = T+2; ONE = T+4
    a("v_mov_b32 v%d, 0x%08x" % (K0, f2u(-2.302208198))); a("v_mov_b32 v%d, 0x%08x" % (K0+1, f2u(-2.302208198)))
    a("v_mov_b32 v%d, 0x%08x" % (K1, f2u(-2.302208198*0.044715))); a("v_mov_b32 v%d, 0x%08x" % (K1+1, f2u(-2.302208198*0.044715)))
    a("v_mov_b32 v%d, 1.0" % ONE); a("v_mov_b32 v%d, 1.0" % (ONE+1))
    U = T+8
    for j in range(c['nQf']):
        for i in range(c['nPf']):
            r = c['acc'](i, j)
            rnd2(a, U+4, r, r+1); rnd2(a, U+4, r+2, r+3)
            for h in range(2):
                x = r+2*h; t = U+2*h
                a("v_pk_mul_f32 v[%d:%d], v[%d:%d], v[%d:%d]" % (t, t+1, x, x+1, x, x+1))
                a("v_pk_fma_f32 v[%d:%d], v[%d:%d], v[%d:%d], v[%d:%d]" % (t, t+1, t, t+1, K1, K1+1, K0, K0+1))
                a("v_pk_mul_f32 v[%d:%d], v[%d:%d], v[%d:%d]" % (t, t+1, t, t+1, x, x+1))
            for e in range(4):
                a("v_exp_f32 v%d, v%d" % (U+e, U+e))
            a("s_nop 0")
            for h in range(2):
                t = U+2*h
                a("v_pk_add_f32 v[%d:%d], v[%d:%d], v[%d:%d]" % (t, t+1, t, t+1, ONE, ONE+1))
            for e in range(4):
                a("v_rcp_f32 v%d, v%d" % (U+e, U+e))
            a("s_nop 0")
            for h in range(2):
                x = r+2*h; t = U+2*h
                a("v_pk_mul_f32 v[%d:%d], v[%d:%d], v[%d:%d]" % (x, x+1, x, x+1, t, t+1))
            a("v_cvt_pk_bf16_f32 v%d, v%d, v%d" % (r, r, r+1))
            a("v_cvt_pk_bf16_f32 v%d, v%d, v%d" % (r+1, r+2, r+3))
            sk = None
            if args.get('short_from') is not None and i == c['nPf']-1:
                sk = a.newlabel("Lsk")
                a("s_cmp_ge_u32 s39, %d" % args['short_from'])
                a("s_cbranch_scc1 %s" % sk)
            a("buffer_store_dwordx2 v[%d:%d], v5, s[24:27], 0 offen offset:%d" % (r, r+1, i*32))
            if sk: a.label(sk)
        a("v_add_u32 v5, %d, v5" % (16*F*2))

def pre_g2(c, args):
    a = c['a']
    srd_from(a, 24, 4, WS['Z'], S*F*2)
    srd_from(a, 28, 4, WS['H'], S*FH*2)
    srd_from(a, 32, c['ptrs'][B_BSP], 0, S*2)
    a("v_mul_u32_u24 v5, %d, v3" % (F*2))
    a("v_lshl_add_u32 v5, v4, 1, v5")
    a("v_mul_u32_u24 v6, %d, v3" % (FH*2))
    a("v_lshl_add_u32 v6, v4, 1, v6")
    a("v_lshlrev_b32 v7, 1, v3")
    T = c['VPRE']
    nPf, nQf = c['nPf'], c['nQf']
    for j in range(nQf):
        a("buffer_load_ushort v%d, v7, s[32:35], 0 offen offset:%d" % (T+j, 32*j))
    for j in range(nQf):
        for i in range(nPf):
            z = T+4+(j*nPf+i)*2
            a("buffer_load_dwordx2 v[%d:%d], v5, s[24:27], 0 offen offset:%d" % (z, z+1, i*32))
        a("v_add_u32 v5, %d, v5" % (16*F*2))
    return 4 + nPf*nQf*2

def epi_g2(c, args):
    a = c['a']
    T = c['VPRE']
    nPf, nQf = c['nPf'], c['nQf']
    a("s_waitcnt vmcnt(0)")
    U = c['VF']
    for j in range(nQf):
        a("v_lshlrev_b32 v%d, 16, v%d" % (T+j, T+j))
        for i in range(nPf):
            r = c['acc'](i, j); z = T+4+(j*nPf+i)*2
            rnd2(a, U, r, r+1); rnd2(a, U, r+2, r+3)
            for e in range(4):
                a("v_add_f32 v%d, v%d, v%d" % (r+e, r+e, T+j))
            rnd2(a, U, r, r+1); rnd2(a, U, r+2, r+3)
            unpack(a, U, U+1, z); unpack(a, U+2, U+3, z+1)
            for h in range(2):
                a("v_pk_mul_f32 v[%d:%d], v[%d:%d], v[%d:%d]" % (r+2*h, r+2*h+1, r+2*h, r+2*h+1, U+2*h, U+2*h+1))
            a("v_cvt_pk_bf16_f32 v%d, v%d, v%d" % (r, r, r+1))
            a("v_cvt_pk_bf16_f32 v%d, v%d, v%d" % (r+1, r+2, r+3))
            sk = None
            if args.get('short_from') is not None and i == nPf-1:
                sk = a.newlabel("Lsk")
                a("s_cmp_ge_u32 s39, %d" % args['short_from'])
                a("s_cbranch_scc1 %s" % sk)
            a("buffer_store_dwordx2 v[%d:%d], v6, s[28:31], 0 offen offset:%d" % (r, r+1, i*32))
            if sk: a.label(sk)
        a("v_add_u32 v6, %d, v6" % (16*FH*2))

def pre_g3(c, args):
    a = c['a']
    srd_from(a, 24, 4, WS[args['xin']], S*D*2)
    if args['out'] == 'dout':
        srd_from(a, 28, c['ptrs'][D_OUT], 0, S*D*2)
    else:
        srd_from(a, 28, 4, WS[args['out']], S*D*2)
    a("v_mul_u32_u24 v5, %d, v3" % (D*2))
    a("v_lshl_add_u32 v5, v4, 1, v5")
    a("v_mov_b32 v6, v5")
    T = c['VPRE']
    nPf, nQf = c['nPf'], c['nQf']
    for j in range(nQf):
        for i in range(nPf):
            z = T+(j*nPf+i)*2
            a("buffer_load_dwordx2 v[%d:%d], v5, s[24:27], 0 offen offset:%d" % (z, z+1, i*32))
        a("v_add_u32 v5, %d, v5" % (16*D*2))
    return nPf*nQf*2

def epi_g3(c, args):
    a = c['a']
    T = c['VPRE']
    nPf, nQf = c['nPf'], c['nQf']
    a("s_waitcnt vmcnt(0)")
    U = c['VF']
    for j in range(nQf):
        for i in range(nPf):
            r = c['acc'](i, j); z = T+(j*nPf+i)*2
            rnd2(a, U, r, r+1); rnd2(a, U, r+2, r+3)
            unpack(a, U, U+1, z); unpack(a, U+2, U+3, z+1)
            for h in range(2):
                a("v_pk_add_f32 v[%d:%d], v[%d:%d], v[%d:%d]" % (r+2*h, r+2*h+1, r+2*h, r+2*h+1, U+2*h, U+2*h+1))
            a("v_cvt_pk_bf16_f32 v%d, v%d, v%d" % (r, r, r+1))
            a("v_cvt_pk_bf16_f32 v%d, v%d, v%d" % (r+1, r+2, r+3))
            a("buffer_store_dwordx2 v[%d:%d], v6, s[28:31], 0 offen offset:%d" % (r, r+1, i*32))
        a("v_add_u32 v6, %d, v6" % (16*D*2))

NKV = S//32
NT_IN = (D//32)*(F//64)
NT_OUT = (FH//32)*(D//64)
COPYSZ = 4160
KVSZ = 96*80
KVIMG = 64*80
CHSZ = 8*COPYSZ + KVSZ
PR_ROWS = 16
def gen_prepa(a, name):
    begin_kernel(a, name)
    end = a.newlabel("Lend"); lw = a.newlabel("Lwarm")
    a("s_cmp_ge_u32 s2, %d" % (S//PR_ROWS + 128))
    a("s_cbranch_scc1 %s" % end)
    a("s_cmp_ge_u32 s2, %d" % (S//PR_ROWS))
    a("s_cbranch_scc1 %s" % lw)
    load_ptr(a, 4, D_WS)
    load_ptr(a, 6, A_K); load_ptr(a, 8, A_V); load_ptr(a, 10, A_SHK)
    a("s_waitcnt lgkmcnt(0)")
    srd_from(a, 16, 6, 0, S*D*2)
    srd_from(a, 20, 8, 0, S*D*2)
    srd_from(a, 24, 10, 0, D*8)
    srd_from(a, 28, 4, WS['KVR'], D*KVIMG)
    R = PR_ROWS
    a("s_mul_i32 s3, s2, %d" % (R*D*2))
    a("v_lshlrev_b32 v1, 2, v0")
    a("v_add_u32 v1, s3, v1")
    a("v_subrev_u32 v2, %d, v1" % (3*D*2))
    a("v_lshlrev_b32 v3, 4, v0")
    a("buffer_load_dwordx4 v[4:7], v3, s[24:27], 0 offen")
    KB = 16; VB = KB + R + 3
    def ld(dst, vbase, i, srd):
        if i % 3 == 0 and i:
            a("v_add_u32 v%d, %d, v%d" % (vbase, 3*1280, vbase))
        a("buffer_load_dword v%d, v%d, s[%d:%d], 0 offen offset:%d" % (dst, vbase, srd, srd+3, (i % 3)*1280))
    for i in range(R+3): ld(KB+i, 2, i, 16)
    for i in range(R): ld(VB+i, 1, i, 20)
    a("s_waitcnt vmcnt(0)")
    W = 60; K0 = 70; K1 = K0 + R + 3; O0 = K1 + R + 3; O1 = O0 + R
    for ch in range(2):
        for t in range(4):
            src = 4 + 2*ch + t//2
            if t % 2 == 0: a("v_lshlrev_b32 v%d, 16, v%d" % (W+4*ch+t, src))
            else: a("v_and_b32 v%d, 0xffff0000, v%d" % (W+4*ch+t, src))
    for i in range(R+3): unpack(a, K0+i, K1+i, KB+i)
    for r in range(R):
        for t in range(4):
            a("v_mul_f32 v8, v%d, v%d" % (W+3-t, K0+r+t))
            a("v_mul_f32 v9, v%d, v%d" % (W+4+3-t, K1+r+t))
            rnd2(a, 10, 8, 9)
            if t == 0:
                a("v_mov_b32 v%d, v8" % (O0+r)); a("v_mov_b32 v%d, v9" % (O1+r))
            else:
                a("v_add_f32 v%d, v%d, v8" % (O0+r, O0+r)); a("v_add_f32 v%d, v%d, v9" % (O1+r, O1+r))
                rnd2(a, 10, O0+r, O1+r)
        unpack(a, 8, 9, VB+r)
        a("v_mul_f32 v%d, v%d, v8" % (O0+r, O0+r)); a("v_mul_f32 v%d, v%d, v9" % (O1+r, O1+r))
    for ch in range(2):
        b = O0 if ch == 0 else O1
        for m in range(R//2):
            a("v_cvt_pk_bf16_f32 v%d, v%d, v%d" % (16+8*ch+m, b+R-1-2*m, b+R-2-2*m))
    a("s_lshr_b32 s3, s2, 1")
    a("s_mul_i32 s3, s3, %d" % (D*64))
    a("s_and_b32 s12, s2, 1")
    a("s_xor_b32 s12, s12, 1")
    a("s_lshl_b32 s12, s12, 5")
    a("s_add_u32 s3, s3, s12")
    a("v_lshlrev_b32 v3, 7, v0")
    a("v_add_u32 v3, s3, v3")
    for ch in range(2):
        for m in range(2):
            a("buffer_store_dwordx4 v[%d:%d], v3, s[28:31], 0 offen offset:%d" % (16+8*ch+4*m, 19+8*ch+4*m, 64*ch+16*m))
    a("s_branch %s" % end)
    a.label(lw)
    load_ptr(a, 4, A_SSMK); load_ptr(a, 6, B_WIN); load_ptr(a, 8, B_WOUT); load_ptr(a, 10, A_Q)
    a("s_waitcnt lgkmcnt(0)")
    srd_from(a, 16, 4, 0, D*S*2); srd_from(a, 20, 6, 0, D*F*2); srd_from(a, 24, 8, 0, FH*D*2); srd_from(a, 28, 10, 0, S*D*2)
    a("s_sub_u32 s3, s2, %d" % (S//PR_ROWS))
    a("s_mul_i32 s3, s3, %d" % (5*5120))
    a("v_lshlrev_b32 v1, 4, v0")
    for i in range(5):
        for sd in (16, 20, 24, 28):
            a("buffer_load_dwordx4 v[8:11], v1, s[%d:%d], s3 offen" % (sd, sd+3))
        a("s_add_u32 s3, s3, 5120")
    a.label(end)
    end_kernel(a, name, O1+R, 40)

NCH = 4
NTRW = 96
def gen_conv(a, name):
    begin_kernel(a, name)
    end = a.newlabel("Lend"); ltr = a.newlabel("Ltr")
    a("s_cmp_ge_u32 s2, %d" % (D//NCH + NTRW))
    a("s_cbranch_scc1 %s" % end)
    load_ptr(a, 4, D_WS)
    a("s_cmp_ge_u32 s2, %d" % (D//NCH))
    a("s_cbranch_scc1 %s" % ltr)
    load_ptr(a, 12, A_SSMK); load_ptr(a, 14, A_SSMD)
    a("s_waitcnt lgkmcnt(0)")
    srd_from(a, 16, 4, WS['KVR'], D*KVIMG)
    a("s_lshl_b32 s3, s2, 3")
    a("s_add_u32 s14, s14, s3"); a("s_addc_u32 s15, s15, 0")
    a("s_load_dwordx2 s[44:45], s[14:15], 0")
    srd_from(a, 24, 12, 0, D*S*2)
    srd_from(a, 28, 4, WS['Y'], S*D*2)
    a("v_lshrrev_b32 v1, 6, v0")
    a("s_nop 0")
    a("v_readfirstlane_b32 s46, v1")
    a("v_and_b32 v2, 63, v0")
    a("s_and_b32 s47, s46, 3")
    a("s_lshr_b32 s48, s46, 2")
    a("s_mul_i32 s49, s47, %d" % CHSZ)
    SB0[0] = 88
    stamp(a, 0)
    a("s_lshl_b32 s3, s2, 2")
    a("s_add_u32 s3, s3, s47")
    a("s_lshl_b32 s50, s3, 6")
    a("s_mul_i32 s51, s48, 3072")
    a("s_add_u32 s51, s51, s49")
    a("s_add_u32 s51, s51, %d" % (8*COPYSZ))
    a("s_mul_i32 s52, s48, 192")
    for pc in range(3):
        a("v_add_u32 v4, s52, v2")
        if pc: a("v_add_u32 v4, %d, v4" % (64*pc))
        a("v_mul_u32_u24 v5, 0x%x, v4" % 52429)
        a("v_lshrrev_b32 v5, 18, v5")
        a("v_mul_u32_u24 v6, 5, v5")
        a("v_sub_u32 v6, v4, v6")
        a("v_min_u32 v6, 3, v6")
        a("v_sub_u32 v5, 63, v5")
        a("v_mul_u32_u24 v5, %d, v5" % (D*64))
        a("v_lshl_add_u32 v%d, v6, 4, v5" % (90+pc))
    sk = a.newlabel("Lsk")
    for pc in range(3):
        if pc == 2:
            a("s_cmp_eq_u32 s48, 1")
            a("s_cbranch_scc1 %s" % sk)
        a("s_add_u32 m0, s51, %d" % (1024*pc))
        a("s_nop 0")
        a("buffer_load_dwordx4 v%d, s[16:19], s50 offen lds" % (90+pc))
    a.label(sk)
    for r in range(4): a("v_mov_b32 v%d, 0" % (84+r))
    for rnd in range(2):
        if rnd:
            a("v_cmp_gt_u32 vcc, 128, v0")
            a("s_and_saveexec_b64 s[58:59], vcc")
        a("v_add_u32 v4, %d, v0" % (512*rnd))
        a("v_mul_u32_u24 v5, 0x%x, v4" % 52429)
        a("v_lshrrev_b32 v5, 23, v5")
        a("v_mul_u32_u24 v6, 160, v5")
        a("v_sub_u32 v6, v4, v6")
        a("v_mul_u32_u24 v5, %d, v5" % CHSZ)
        a("v_lshl_add_u32 v5, v6, 4, v5")
        a("v_add_u32 v5, %d, v5" % (8*COPYSZ + 64*80))
        a("ds_write_b128 v5, v[84:87]")
        if rnd: a("s_mov_b64 exec, -1")
    a("s_lshl_b32 s3, s2, 14")
    for i in range(3):
        b = 12 + 8*i
        for r in range(8): a("v_mov_b32 v%d, 0" % (b+r))
        a("v_add_u32 v4, %d, v0" % (512*i))
        a("v_mul_u32_u24 v5, 0x%x, v4" % 64528)
        a("v_lshrrev_b32 v5, 24, v5")
        a("v_mul_u32_u24 v6, 260, v5")
        a("v_sub_u32 v6, v4, v6")
        a("v_mul_u32_u24 v7, %d, v5" % CHSZ)
        a("v_lshl_add_u32 v%d, v6, 4, v7" % (40+i))
        a("v_lshlrev_b32 v7, 12, v5")
        a("v_add_u32 v7, s3, v7")
        a("v_subrev_u32 v9, 4, v6")
        a("v_lshl_add_u32 v10, v9, 4, v7")
        a("v_cmp_gt_u32 s[60:61], 4, v5")
        a("v_cmp_gt_u32 vcc, 256, v9")
        a("s_and_b64 vcc, vcc, s[60:61]")
        a("s_and_saveexec_b64 s[62:63], vcc")
        a("buffer_load_dwordx4 v[%d:%d], v10, s[24:27], 0 offen" % (b, b+3))
        a("s_mov_b64 exec, -1")
        a("v_add_u32 v9, 1, v9")
        a("v_cmp_gt_u32 vcc, 256, v9")
        a("s_and_b64 vcc, vcc, s[60:61]")
        a("s_and_saveexec_b64 s[62:63], vcc")
        a("buffer_load_dwordx4 v[%d:%d], v10, s[24:27], 0 offen offset:16" % (b+4, b+7))
        a("s_mov_b64 exec, -1")
    stamp(a, 1)
    a("s_waitcnt vmcnt(0) lgkmcnt(0)")
    stamp(a, 2)
    for i in range(3):
        b = 12 + 8*i
        skip = a.newlabel("Lsk")
        if i == 2:
            a("v_cmp_gt_u32 vcc, 16, v0")
            a("s_and_saveexec_b64 s[58:59], vcc")
            a("s_cbranch_execz %s" % skip)
        for r in range(8):
            sh = 1 + r
            o = 44 + 4*(r % 2)
            for m in range(4):
                if sh % 2 == 0:
                    a("v_mov_b32 v%d, v%d" % (o+m, b + sh//2 + m))
                else:
                    lo = b + (sh-1)//2 + m
                    a("v_alignbit_b32 v%d, v%d, v%d, 16" % (o+m, lo+1, lo))
            a("ds_write_b128 v%d, v[%d:%d] offset:%d" % (40+i, o, o+3, r*COPYSZ))
        if i == 2:
            a.label(skip)
            a("s_mov_b64 exec, -1")
    a("s_waitcnt vmcnt(0) lgkmcnt(0)")
    stamp(a, 3)
    a("s_barrier")
    stamp(a, 4)
    a("v_and_b32 v3, 31, v2")
    a("v_lshrrev_b32 v4, 5, v2")
    a("v_and_b32 v5, 7, v3")
    a("v_mul_u32_u24 v5, %d, v5" % COPYSZ)
    a("v_and_b32 v6, 24, v3")
    a("v_lshl_add_u32 v6, v4, 3, v6")
    a("v_lshl_add_u32 v5, v6, 1, v5")
    a("v_add_u32 v5, s49, v5")
    a("s_lshl_b32 s52, s48, 5")
    a("v_add_u32 v7, s52, v3")
    a("v_sub_u32 v8, 63, v7")
    a("v_mul_u32_u24 v8, 80, v8")
    a("v_lshl_add_u32 v8, v4, 4, v8")
    a("v_add_u32 v8, s49, v8")
    a("v_add_u32 v8, %d, v8" % (8*COPYSZ))
    for r in range(16): a("v_mov_b32 v%d, 0" % (96+r))
    a("s_lshl_b32 s53, s48, 3")
    a("s_add_u32 s53, s53, 8")
    UN = 2
    def rd(setb, cbase):
        for c in range(UN):
            for kb in range(2):
                idx = c*2+kb
                a("ds_read_b128 v[%d:%d], v5 offset:%d" % (setb+idx*4, setb+idx*4+3, (cbase+c)*64 + kb*32))
                a("ds_read_b128 v[%d:%d], v8 offset:%d" % (setb+16+idx*4, setb+16+idx*4+3, (cbase+c)*80 + kb*32))
    def mm(setb):
        for idx in range(2*UN):
            a("v_mfma_f32_32x32x16_bf16 v[96:111], v[%d:%d], v[%d:%d], v[96:111]" % (setb+idx*4, setb+idx*4+3, setb+16+idx*4, setb+16+idx*4+3))
    rd(32, 0)
    loop = a.newlabel("Lconv")
    a.label(loop)
    rd(64, UN)
    a("s_waitcnt lgkmcnt(8)")
    mm(32)
    rd(32, 2*UN)
    a("s_waitcnt lgkmcnt(8)")
    mm(64)
    a("v_add_u32 v5, %d, v5" % (2*UN*64))
    a("v_add_u32 v8, %d, v8" % (2*UN*80))
    a("s_sub_u32 s53, s53, 1")
    a("s_cmp_lg_u32 s53, 0")
    a("s_cbranch_scc1 %s" % loop)
    a("s_waitcnt lgkmcnt(0)")
    a("s_nop 15")
    stamp(a, 5)
    a("v_sub_u32 v9, 63, v7")
    a("v_mul_u32_u24 v9, 80, v9")
    a("v_add_u32 v9, s49, v9")
    a("v_lshlrev_b32 v10, 3, v4")
    a("v_sub_u32 v9, v9, v10")
    a("v_add_u32 v9, %d, v9" % (8*COPYSZ + 2*28 - 48))
    for rq in range(4):
        a("ds_read_b64 v[%d:%d], v9 offset:%d" % (48+2*rq, 49+2*rq, 48 - 16*rq))
    a("s_lshr_b32 s54, s47, 1")
    a("s_cmp_eq_u32 s54, 0")
    a("s_cselect_b32 s54, s44, s45")
    a("s_lshl_b32 s55, s54, 16")
    a("s_and_b32 s54, s54, 0xffff0000")
    a("s_and_b32 s56, s47, 1")
    a("s_cmp_eq_u32 s56, 0")
    a("s_cselect_b32 s54, s55, s54")
    a("s_waitcnt lgkmcnt(0)")
    for rq in range(4):
        r = 96+4*rq
        unpack(a, 59, 58, 48+2*rq)
        unpack(a, 57, 56, 49+2*rq)
        for e in range(4):
            a("v_mul_f32 v%d, s54, v%d" % (56+e, 56+e))
        rnd2(a, 60, 56, 57); rnd2(a, 60, 58, 59)
        rnd2(a, 60, r, r+1); rnd2(a, 60, r+2, r+3)
        for e in range(4):
            a("v_add_f32 v%d, v%d, v%d" % (r+e, r+e, 56+e))
        a("v_cvt_pk_bf16_f32 v%d, v%d, v%d" % (r, r, r+1))
        a("v_cvt_pk_bf16_f32 v%d, v%d, v%d" % (r+1, r+2, r+3))
    a("s_barrier")
    a("v_lshlrev_b32 v11, 5, v7")
    a("v_lshl_add_u32 v11, v4, 2, v11")
    a("v_lshlrev_b32 v11, 3, v11")
    a("v_lshl_add_u32 v11, v7, 3, v11")
    a("s_lshl_b32 s56, s47, 1")
    a("v_add_u32 v11, s56, v11")
    for rq in range(4):
        r = 96+4*rq
        a("ds_write_b16 v11, v%d offset:%d" % (r, 64*rq))
        a("ds_write_b16_d16_hi v11, v%d offset:%d" % (r, 64*rq+8))
        a("ds_write_b16 v11, v%d offset:%d" % (r+1, 64*rq+16))
        a("ds_write_b16_d16_hi v11, v%d offset:%d" % (r+1, 64*rq+24))
    a("s_waitcnt lgkmcnt(0)")
    a("s_barrier")
    a("v_lshlrev_b32 v12, 3, v0")
    a("v_lshrrev_b32 v14, 5, v0")
    a("v_lshl_add_u32 v14, v14, 3, v12")
    for i in range(4):
        a("ds_read_b64 v[%d:%d], v14 offset:%d" % (16+2*i, 17+2*i, (4096+128)*i))
    a("s_lshl_b32 s3, s2, 14")
    a("v_add_u32 v13, s3, v12")
    for i in range(4):
        a("s_waitcnt lgkmcnt(%d)" % (3-i))
        a("buffer_store_dwordx2 v[%d:%d], v13, s[28:31], 0 offen" % (16+2*i, 17+2*i))
        a("v_add_u32 v13, 0x%x, v13" % 4096)
    if 'stamp' in EXP: a("s_waitcnt vmcnt(0)")
    stamp(a, 6)
    stamp_out(a, 7, 46)
    SB0[0] = 70
    a("s_branch %s" % end)
    a.label(ltr)
    load_ptr(a, 6, B_WIN); load_ptr(a, 8, B_WOUT)
    a("s_waitcnt lgkmcnt(0)")
    srd_from(a, 16, 6, 0, D*F*2)
    srd_from(a, 20, 4, WS['WINT'], D*F*2)
    srd_from(a, 24, 8, 0, D*FH*2)
    srd_from(a, 28, 4, WS['WOUTT'], D*FH*2)
    a("v_lshrrev_b32 v20, 8, v0")
    a("v_and_b32 v21, 255, v0")
    a("v_lshrrev_b32 v1, 3, v21")
    a("v_and_b32 v2, 7, v21")
    a("v_mul_u32_u24 v4, 640, v2")
    a("v_lshl_add_u32 v4, v1, 1, v4")
    a("v_mul_u32_u24 v22, 5120, v20")
    a("v_add_u32 v4, v4, v22")
    a("v_lshrrev_b32 v5, 2, v21")
    a("v_and_b32 v6, 3, v21")
    a("v_mul_u32_u24 v7, 80, v5")
    a("v_lshl_add_u32 v7, v6, 4, v7")
    a("v_add_u32 v7, v7, v22")
    a("s_sub_u32 s3, s2, %d" % (D//NCH))
    a("s_lshl_b32 s3, s3, 1")
    a("v_add_u32 v23, s3, v20")
    NT = NT_IN + NT_OUT
    NIT = (NT + 2*NTRW - 1)//(2*NTRW)
    for it in range(NIT):
        m_in = 40 + 4*it; m_out = 42 + 4*it
        a("v_cmp_gt_u32 vcc, %d, v23" % NT_IN)
        a("s_mov_b64 s[80:81], vcc")
        a("v_cmp_gt_u32 vcc, %d, v23" % NT)
        a("s_mov_b64 s[82:83], vcc")
        a("v_subrev_u32 v24, %d, v23" % NT_IN)
        a("v_cndmask_b32 v24, v24, v23, s[80:81]")
        a("v_mul_u32_u24 v25, 0x%x, v24" % ((1 << 20)//27 + 1)); a("v_lshrrev_b32 v25, 20, v25")
        a("v_mul_u32_u24 v26, 0x%x, v24" % ((1 << 20)//10 + 1)); a("v_lshrrev_b32 v26, 20, v26")
        a("v_cndmask_b32 v25, v26, v25, s[80:81]")
        a("v_mov_b32 v26, 10"); a("v_cndmask_b32 v26, v26, 27, s[80:81]")
        a("v_mul_u32_u24 v26, v26, v25"); a("v_sub_u32 v26, v24, v26")
        a("v_mov_b32 v27, %d" % (D*2)); a("v_mov_b32 v28, %d" % (F*2)); a("v_cndmask_b32 v27, v27, v28, s[80:81]")
        a("v_mov_b32 v28, %d" % (FH*2)); a("v_mov_b32 v29, %d" % (D*2)); a("v_cndmask_b32 v28, v28, v29, s[80:81]")
        a("v_lshl_add_u32 v29, v25, 5, v1")
        a("v_mul_lo_u32 v29, v29, v27")
        a("v_lshl_add_u32 v29, v2, 4, v29")
        a("v_lshl_add_u32 v29, v26, 7, v29")
        vo = 32 + it
        a("v_lshl_add_u32 v%d, v26, 6, v5" % vo)
        a("v_mul_lo_u32 v%d, v%d, v28" % (vo, vo))
        a("v_lshl_add_u32 v%d, v6, 4, v%d" % (vo, vo))
        a("v_lshl_add_u32 v%d, v25, 6, v%d" % (vo, vo))
        a("s_and_b64 s[%d:%d], s[80:81], s[82:83]" % (m_in, m_in+1))
        a("s_andn2_b64 s[%d:%d], s[82:83], s[80:81]" % (m_out, m_out+1))
        vd = 40 + 4*it
        a("s_mov_b64 exec, s[%d:%d]" % (m_in, m_in+1))
        a("buffer_load_dwordx4 v[%d:%d], v29, s[16:19], 0 offen" % (vd, vd+3))
        a("s_mov_b64 exec, s[%d:%d]" % (m_out, m_out+1))
        a("buffer_load_dwordx4 v[%d:%d], v29, s[24:27], 0 offen" % (vd, vd+3))
        a("s_mov_b64 exec, -1")
        a("v_add_u32 v23, %d, v23" % (2*NTRW))
    a("s_waitcnt vmcnt(0)")
    for it in range(NIT):
        vd = 40 + 4*it
        for e in range(8):
            if e % 2 == 0: a("ds_write_b16 v4, v%d offset:%d" % (vd+e//2, e*80 + it*10240))
            else: a("ds_write_b16_d16_hi v4, v%d offset:%d" % (vd+e//2, e*80 + it*10240))
    a("s_waitcnt lgkmcnt(0)")
    a("s_barrier")
    for it in range(NIT):
        vd = 40 + 4*it
        a("ds_read_b128 v[%d:%d], v7 offset:%d" % (vd, vd+3, it*10240))
    for it in range(NIT):
        vd = 40 + 4*it; vo = 32 + it
        m_in = 40 + 4*it; m_out = 42 + 4*it
        a("s_waitcnt lgkmcnt(%d)" % (NIT-1-it))
        a("s_mov_b64 exec, s[%d:%d]" % (m_in, m_in+1))
        a("buffer_store_dwordx4 v[%d:%d], v%d, s[20:23], 0 offen" % (vd, vd+3, vo))
        a("s_mov_b64 exec, s[%d:%d]" % (m_out, m_out+1))
        a("buffer_store_dwordx4 v[%d:%d], v%d, s[28:31], 0 offen" % (vd, vd+3, vo))
        a("s_mov_b64 exec, -1")
    if 'nowarm' not in EXP:
        load_ptr(a, 6, B_WSP)
        a("s_waitcnt lgkmcnt(0)")
        srd_from(a, 16, 6, 0, S*S*2)
        a("s_sub_u32 s3, s2, %d" % (D//NCH))
        a("s_mul_i32 s3, s3, %d" % (11*8192))
        a("v_lshlrev_b32 v1, 4, v0")
        for i in range(11):
            a("buffer_load_dwordx4 v[8:11], v1, s[16:19], s3 offen")
            a("s_add_u32 s3, s3, 8192")
    a.label(end)
    end_kernel(a, name, 176, 102)

def main():
    a = Asm()
    launches = []
    gen_prepa(a, "prepa_kernel"); launches.append(("prepa_kernel", S//PR_ROWS + 128, 320, 0))
    gen_conv(a, "conv_kernel"); launches.append(("conv_kernel", D//NCH + NTRW, 512, NCH*CHSZ))
    gen_e(a, "e1_kernel", (('in', A_Q), 'X1'))
    gen_e(a, "e2_kernel", (('ws', 'X2'), 'X3'))
    if 'g1old' in EXP:
        l1 = gen_gemm(a, "g1_kernel", ('ws', 'WINT', D*2, F*D*2), ('ws', 'XN', D*2, S*D*2), D, 192, 128, F//192, S//128, epi_g1, {'pre': pre_g1}, NS=4, WPn=4, WQn=2, xcd=(2,4))
    else:
        l1 = gen_gemm(a, "g1_kernel", ('ws', 'WINT', D*2, F*D*2+32768), ('ws', 'XN', D*2, S*D*2), D, 112, 128, 16, S//128, epi_g1, {'pre': pre_g1, 'short_from': 6, 'halves': True}, NS=5, WPn=1, WQn=int(os.environ.get('WQ1','4')), xcd=(4,2))
    gen_ln2(a, "ln2_kernel")
    l2 = gen_gemm(a, "g2_kernel", ('ws', 'Z2T', S*2, FH*S*2+4096), ('in', B_WSP, S*2, S*S*2), S, 112, 64, 8, S//64, epi_g2, {'in_slots': [B_BSP], 'pblocked': True, 'pre': pre_g2, 'short_from': 6, 'l2pf': (448 if 'l2' in EXP else 0)}, NS=6, WPn=1, WQn=WQ2, nL=NLG, xcd=(2,4))
    l3 = gen_gemm(a, "g3a_kernel", ('ws', 'WOUTT', FH*2, D*FH*2+4096), ('ws', 'H', FH*2, S*FH*2+4096), FH, 80, 64, D//80, S//64, epi_g3, {'xin': 'X1', 'out': 'X2', 'pre': pre_g3}, NS=7, WPn=1, WQn=WQ3, nL=NLG, xcd=(2,4))
    gen_gemm(a, "g3b_kernel", ('ws', 'WOUTT', FH*2, D*FH*2+4096), ('ws', 'H', FH*2, S*FH*2+4096), FH, 80, 64, D//80, S//64, epi_g3, {'xin': 'X3', 'out': 'dout', 'in_slots': [D_OUT], 'pre': pre_g3}, NS=7, WPn=1, WQn=WQ3, nL=NLG, xcd=(2,4))
    for lay in range(2):
        launches.append(("e%d_kernel" % (lay+1), S//16, 1024, 160*144))
        launches.append(("g1_kernel",) + l1)
        launches.append(("ln2_kernel", S//LN2_ROWS, 1024, 256))
        launches.append(("g2_kernel",) + l2)
        launches.append(("g3a_kernel" if lay == 0 else "g3b_kernel",) + l3)
    nl = int(sys.argv[2]) if len(sys.argv) > 2 else len(launches)
    out = []
    for (k, g, b, l) in launches[:nl]:
        out.append("; @launch kernel=%s grid=(%d,1,1) block=(%d,1,1) lds=%d" % (k, g, b, l))
    out.append('.amdgcn_target "amdgcn-amd-amdhsa--gfx950"')
    out.append(".text")
    out += a.lines
    out.append('.section .rodata,"a"')
    for (k, nv, ns) in a.kernels:
        nv8 = (nv + 7)//8*8
        out.append(".p2align 6")
        out.append(".amdhsa_kernel %s" % k)
        out.append("  .amdhsa_next_free_vgpr %d" % nv8)
        out.append("  .amdhsa_next_free_sgpr %d" % ns)
        out.append("  .amdhsa_accum_offset %d" % nv8)
        out.append("  .amdhsa_group_segment_fixed_size 0")
        out.append("  .amdhsa_kernarg_size 112")
        out.append("  .amdhsa_user_sgpr_count 2")
        out.append("  .amdhsa_user_sgpr_kernarg_segment_ptr 1")
        out.append("  .amdhsa_system_sgpr_workgroup_id_x 1")
        out.append(".end_amdhsa_kernel")
    open(sys.argv[1], "w").write("\n".join(out) + "\n")
    import json
    json.dump(WS, open(sys.argv[1] + ".ws.json", "w"))

if __name__ == "__main__":
    main()
```

```python
import math, sys, os
EXP = os.environ.get('EXP', '')
NLG = int(os.environ.get('NLG', '4'))
WQ2 = int(os.environ.get('WQ2', '4'))
WQ3 = int(os.environ.get('WQ3', '4'))

S = 2048; D = 640; F = 1728; FH = 864
NAME = "interleave_layers__ssm_conv_h3__mixer_gmlp__prompt"

A_Q, A_K, A_V, A_SHK, A_SSMK, A_SSMD, B_X, B_WIN, B_WSP, B_BSP, B_WOUT, D_OUT, D_DBG, D_WS = [8*i for i in range(14)]

def al(x, a=4096): return (x + a - 1)//a*a
WS = {}
_off = 0
def ws_alloc(name, nbytes):
    global _off
    WS[name] = _off
    _off = al(_off + nbytes + 4096)
ws_alloc('Y', S*D*2)
ws_alloc('WINT', F*D*2)
ws_alloc('WOUTT', D*FH*2)
ws_alloc('X1', S*D*2)
ws_alloc('XN', S*D*2)
ws_alloc('Z', S*F*2)
ws_alloc('Z2T', FH*S*2)
ws_alloc('H', S*FH*2)
ws_alloc('X2', S*D*2)
ws_alloc('X3', S*D*2)
ws_alloc('KVR', D*64*80)
WS_TOTAL = _off

class Asm:
    def __init__(self):
        self.lines = []
        self.kernels = []
        self.lab = 0
    def __call__(self, s):
        self.lines.append("    " + s)
    def label(self, l):
        self.lines.append(l + ":")
    def newlabel(self, p="L"):
        self.lab += 1
        return "%s_%d" % (p, self.lab)
    def raw(self, s):
        self.lines.append(s)

def begin_kernel(a, name):
    a.raw(".p2align 8")
    a.raw(".type %s,@function" % name)
    a.raw("%s:" % name)

def end_kernel(a, name, nv, ns=102):
    a("s_endpgm")
    a.kernels.append((name, nv, ns))

def load_ptr(a, sdst, slot):
    a("s_load_dwordx2 s[%d:%d], s[0:1], %d" % (sdst, sdst+1, slot))

def srd_from(a, sd, sptr, off, nbytes):
    if off:
        a("s_add_u32 s%d, s%d, 0x%x" % (sd, sptr, off))
        a("s_addc_u32 s%d, s%d, 0" % (sd+1, sptr+1))
    else:
        a("s_mov_b32 s%d, s%d" % (sd, sptr))
        a("s_mov_b32 s%d, s%d" % (sd+1, sptr+1))
    a("s_mov_b32 s%d, 0x%x" % (sd+2, nbytes))
    a("s_mov_b32 s%d, 0x00020000" % (sd+3))

def wave_sum(a, vsrc, vt, s0):
    a("s_nop 1")
    a("v_add_f32_dpp v%d, v%d, v%d quad_perm:[1,0,3,2] row_mask:0xf bank_mask:0xf" % (vt, vsrc, vsrc))
    a("s_nop 1")
    a("v_add_f32_dpp v%d, v%d, v%d quad_perm:[2,3,0,1] row_mask:0xf bank_mask:0xf" % (vt, vt, vt))
    a("s_nop 1")
    a("v_add_f32_dpp v%d, v%d, v%d row_half_mirror row_mask:0xf bank_mask:0xf" % (vt, vt, vt))
    a("s_nop 1")
    a("v_add_f32_dpp v%d, v%d, v%d row_mirror row_mask:0xf bank_mask:0xf" % (vt, vt, vt))
    a("s_nop 1")
    for i in range(4):
        a("v_readlane_b32 s%d, v%d, %d" % (s0+i, vt, 16*i))
    a("s_nop 1")
    a("v_mov_b32 v%d, s%d" % (vt, s0))
    for i in range(1, 4):
        a("v_add_f32 v%d, s%d, v%d" % (vt, s0+i, vt))

def rnd2(a, vpk, va, vb):
    a("v_cvt_pk_bf16_f32 v%d, v%d, v%d" % (vpk, va, vb))
    a("v_lshlrev_b32 v%d, 16, v%d" % (va, vpk))
    a("v_and_b32 v%d, 0xffff0000, v%d" % (vb, vpk))

def unpack(a, vlo, vhi, vsrc):
    a("v_lshlrev_b32 v%d, 16, v%d" % (vlo, vsrc))
    a("v_and_b32 v%d, 0xffff0000, v%d" % (vhi, vsrc))

def layernorm_regs(a, xs, n, vt, vm, vr, vpk, s0, valid=None, nvalid_tail=None):
    ln_stats(a, xs, n, vt, vm, vr, vpk, s0, valid, nvalid_tail)
    for i in range(0, len(xs), 2):
        x0, x1 = xs[i], xs[i+1]
        a("v_sub_f32 v%d, v%d, v%d" % (x0, x0, vm))
        a("v_sub_f32 v%d, v%d, v%d" % (x1, x1, vm))
        rnd2(a, vpk, x0, x1)
        a("v_mul_f32 v%d, v%d, v%d" % (x0, x0, vr))
        a("v_mul_f32 v%d, v%d, v%d" % (x1, x1, vr))
        rnd2(a, vpk, x0, x1)


def wave_sum2(a, va, vb, s0):
    for pat in ("quad_perm:[1,0,3,2]", "quad_perm:[2,3,0,1]", "row_half_mirror", "row_mirror"):
        a("s_nop 0")
        a("v_add_f32_dpp v%d, v%d, v%d %s row_mask:0xf bank_mask:0xf" % (va, va, va, pat))
        a("v_add_f32_dpp v%d, v%d, v%d %s row_mask:0xf bank_mask:0xf" % (vb, vb, vb, pat))
    a("s_nop 0")
    for i in range(4):
        a("v_readlane_b32 s%d, v%d, %d" % (s0+i, va, 16*i))
    for i in range(4):
        a("v_readlane_b32 s%d, v%d, %d" % (s0+4+i, vb, 16*i))
    a("v_mov_b32 v%d, s%d" % (va, s0))
    a("v_mov_b32 v%d, s%d" % (vb, s0+4))
    for i in range(1, 4):
        a("v_add_f32 v%d, s%d, v%d" % (va, s0+i, va))
        a("v_add_f32 v%d, s%d, v%d" % (vb, s0+4+i, vb))

def ln_stats(a, xs, n, vt, vm, vr, vpk, s0, valid=None, nvalid_tail=None):
    a("v_add_f32 v%d, v%d, v%d" % (vm, xs[0], xs[1]))
    a("v_mul_f32 v%d, v%d, v%d" % (vr, xs[0], xs[0]))
    a("v_fmac_f32 v%d, v%d, v%d" % (vr, xs[1], xs[1]))
    for x in xs[2:]:
        a("v_add_f32 v%d, v%d, v%d" % (vm, vm, x))
        a("v_fmac_f32 v%d, v%d, v%d" % (vr, x, x))
    a("s_nop 0")
    wave_sum2(a, vm, vr, s0)
    a("v_mul_f32 v%d, 0x%08x, v%d" % (vm, f2u(1.0/n), vm))
    a("v_mul_f32 v%d, 0x%08x, v%d" % (vr, f2u(1.0/n), vr))
    a("v_fma_f32 v%d, -v%d, v%d, v%d" % (vr, vm, vm, vr))
    a("v_max_f32 v%d, 0, v%d" % (vr, vr))
    rnd2(a, vpk, vm, vr)
    a("v_add_f32 v%d, 0x%08x, v%d" % (vr, f2u(1e-5), vr))
    a("v_cvt_pk_bf16_f32 v%d, v%d, v%d" % (vpk, vr, vr))
    a("v_lshlrev_b32 v%d, 16, v%d" % (vr, vpk))
    a("v_sqrt_f32 v%d, v%d" % (vr, vr))
    a("s_nop 0")
    a("v_cvt_pk_bf16_f32 v%d, v%d, v%d" % (vpk, vr, vr))
    a("v_lshlrev_b32 v%d, 16, v%d" % (vr, vpk))
    a("v_rcp_f32 v%d, v%d" % (vr, vr))
    a("s_nop 0")

import struct
def f2u(f):
    return struct.unpack("<I", struct.pack("<f", f))[0]

def gen_e(a, name, src):
    srcspec, dstname = src
    begin_kernel(a, name)
    end = a.newlabel("Lend")
    a("s_cmp_ge_u32 s2, %d" % (S//16))
    a("s_cbranch_scc1 %s" % end)
    load_ptr(a, 4, D_WS)
    if srcspec[0] == 'in':
        load_ptr(a, 6, srcspec[1])
    a("s_waitcnt lgkmcnt(0)")
    if srcspec[0] == 'in':
        srd_from(a, 8, 6, 0, S*D*2)
    else:
        srd_from(a, 8, 4, WS[srcspec[1]], S*D*2)
    srd_from(a, 12, 4, WS['Y'], S*D*2)
    srd_from(a, 16, 4, WS[dstname], S*D*2)
    srd_from(a, 20, 4, WS['XN'], S*D*2)
    a("v_lshrrev_b32 v1, 6, v0")
    a("s_lshl_b32 s3, s2, 4")
    a("v_add_u32 v1, s3, v1")
    a("v_and_b32 v2, 63, v0")
    a("v_mul_u32_u24 v1, %d, v1" % (D*2))
    a("v_lshl_add_u32 v1, v2, 3, v1")
    a("v_cmp_gt_u32 vcc, 32, v2")
    a("s_nop 1")
    a("v_cndmask_b32 v58, 0, 1.0, vcc")
    a("s_mov_b64 s[30:31], vcc")
    for r in (8, 9, 14, 15): a("v_mov_b32 v%d, 0" % r)
    a("v_lshrrev_b32 v3, 3, v0")
    a("v_and_b32 v59, 7, v0")
    a("v_lshlrev_b32 v60, 14, v3")
    a("v_lshl_add_u32 v60, v59, 4, v60")
    a("s_lshl_b32 s3, s2, 7")
    a("buffer_load_dwordx4 v[16:19], v60, s[12:15], s3 offen")
    a("v_cmp_gt_u32 vcc, 256, v0")
    a("s_and_saveexec_b64 s[28:29], vcc")
    a("v_add_u32 v60, 0x%x, v60" % (128*16384))
    a("buffer_load_dwordx4 v[44:47], v60, s[12:15], s3 offen")
    a("s_mov_b64 exec, -1")
    a("buffer_load_dwordx2 v[4:5], v1, s[8:11], 0 offen")
    a("buffer_load_dwordx2 v[6:7], v1, s[8:11], 0 offen offset:512")
    a("s_mov_b64 exec, s[30:31]")
    a("buffer_load_dwordx2 v[8:9], v1, s[8:11], 0 offen offset:1024")
    a("s_mov_b64 exec, -1")
    a("v_mul_u32_u24 v3, 144, v3")
    a("v_lshl_add_u32 v3, v59, 4, v3")
    a("s_waitcnt vmcnt(3)")
    a("ds_write_b128 v3, v[16:19]")
    a("s_mov_b64 exec, s[28:29]")
    a("v_cmp_gt_u32 vcc, 256, v0")
    a("s_and_saveexec_b64 s[28:29], vcc")
    a("ds_write_b128 v3, v[44:47] offset:%d" % (128*144))
    a("s_mov_b64 exec, -1")
    a("s_waitcnt lgkmcnt(0)")
    a("s_barrier")
    a("v_lshrrev_b32 v3, 6, v0")
    a("v_lshlrev_b32 v3, 3, v3")
    a("v_mul_u32_u24 v59, 144, v2")
    a("v_add_u32 v3, v3, v59")
    a("ds_read_b64 v[10:11], v3")
    a("ds_read_b64 v[12:13], v3 offset:%d" % (64*144))
    a("s_mov_b64 exec, s[30:31]")
    a("ds_read_b64 v[14:15], v3 offset:%d" % (128*144))
    a("s_mov_b64 exec, -1")
    X = list(range(20, 32)); L = list(range(32, 44)); Yv = list(range(44, 56))
    a("s_waitcnt vmcnt(0) lgkmcnt(0)")
    for i in range(6):
        unpack(a, X[2*i], X[2*i+1], 4+i)
        a("v_mov_b32 v%d, v%d" % (L[2*i], X[2*i]))
        a("v_mov_b32 v%d, v%d" % (L[2*i+1], X[2*i+1]))
    layernorm_regs(a, L, D, 61, 62, 63, 57, 32, valid=58, nvalid_tail=4)
    for i in range(6):
        unpack(a, Yv[2*i], Yv[2*i+1], 10+i)
    for i in range(0, 12, 2):
        a("v_mul_f32 v%d, v%d, v%d" % (L[i], L[i], Yv[i]))
        a("v_mul_f32 v%d, v%d, v%d" % (L[i+1], L[i+1], Yv[i+1]))
        rnd2(a, 57, L[i], L[i+1])
        a("v_add_f32 v%d, v%d, v%d" % (X[i], X[i], L[i]))
        a("v_add_f32 v%d, v%d, v%d" % (X[i+1], X[i+1], L[i+1]))
        rnd2(a, 4+i//2, X[i], X[i+1])
    a("buffer_store_dwordx2 v[4:5], v1, s[16:19], 0 offen")
    a("buffer_store_dwordx2 v[6:7], v1, s[16:19], 0 offen offset:512")
    a("s_mov_b64 exec, s[30:31]")
    a("buffer_store_dwordx2 v[8:9], v1, s[16:19], 0 offen offset:1024")
    a("s_mov_b64 exec, -1")
    layernorm_regs(a, X, D, 61, 62, 63, 57, 32, valid=58, nvalid_tail=4)
    for i in range(6):
        a("v_cvt_pk_bf16_f32 v%d, v%d, v%d" % (10+i, X[2*i], X[2*i+1]))
    a("buffer_store_dwordx2 v[10:11], v1, s[20:23], 0 offen")
    a("buffer_store_dwordx2 v[12:13], v1, s[20:23], 0 offen offset:512")
    a("s_mov_b64 exec, s[30:31]")
    a("buffer_store_dwordx2 v[14:15], v1, s[20:23], 0 offen offset:1024")
    a.label(end)
    end_kernel(a, name, 64, 40)

LN2_ROWS = 16
LN2_PITCH = 48
def gen_ln2(a, name):
    begin_kernel(a, name)
    end = a.newlabel("Lend")
    a("s_cmp_ge_u32 s2, %d" % (S//LN2_ROWS))
    a("s_cbranch_scc1 %s" % end)
    load_ptr(a, 4, D_WS)
    a("s_waitcnt lgkmcnt(0)")
    srd_from(a, 8, 4, WS['Z'], S*F*2)
    srd_from(a, 12, 4, WS['Z2T'], FH*S*2)
    a("v_and_b32 v2, 63, v0")
    a("v_lshrrev_b32 v3, 6, v0")
    a("v_cmp_gt_u32 vcc, 54, v2")
    a("s_nop 1")
    a("v_cndmask_b32 v4, 0, 1.0, vcc")
    a("s_mov_b64 s[30:31], vcc")
    a("s_mul_i32 s3, s2, %d" % (16*F*2))
    a("s_add_u32 s3, s3, %d" % (FH*2))
    a("v_mul_u32_u24 v7, %d, v3" % (F*2))
    a("v_lshl_add_u32 v7, v2, 4, v7")
    X = list(range(24, 40))
    for i in range(8):
        a("v_mov_b32 v%d, 0" % (12+i))
    a("s_mov_b64 exec, s[30:31]")
    a("buffer_load_dwordx4 v[12:15], v7, s[8:11], s3 offen")
    a("buffer_load_dwordx4 v[16:19], v7, s[8:11], s3 offen offset:%d" % (54*16))
    a("s_mov_b64 exec, -1")
    a("v_lshlrev_b32 v8, 1, v0")
    PB = 48
    for r in range(16):
        if r and r % 1 == 0 and (r*F*2) > 4095 and r % 1 == 0:
            pass
        a("s_add_u32 s24, s3, %d" % (r*F*2))
        a("buffer_load_ushort v%d, v8, s[8:11], s24 offen" % (PB+r))
    a("s_waitcnt vmcnt(16)")
    for i in range(8):
        unpack(a, X[2*i], X[2*i+1], 12+i)
    ln_stats(a, X, FH, 40, 41, 42, 43, 32, valid=4)
    a("v_lshlrev_b32 v9, 3, v3")
    a("v_mov_b32 v44, v41"); a("v_mov_b32 v45, v42")
    a("ds_write_b64 v9, v[44:45]")
    a("s_waitcnt lgkmcnt(0)")
    a("s_barrier")
    a("v_cmp_gt_u32 vcc, %d, v0" % FH)
    a("s_and_saveexec_b64 s[28:29], vcc")
    a("s_cbranch_execz %s" % end)
    a("v_mov_b32 v9, 0")
    for i in range(8):
        a("ds_read_b128 v[%d:%d], v9 offset:%d" % (64+4*i, 67+4*i, 16*i))
    a("s_waitcnt vmcnt(0) lgkmcnt(0)")
    for r in range(0, 16, 2):
        x0, x1 = PB+r, PB+r+1
        a("v_lshlrev_b32 v%d, 16, v%d" % (x0, x0))
        a("v_lshlrev_b32 v%d, 16, v%d" % (x1, x1))
        a("v_sub_f32 v%d, v%d, v%d" % (x0, x0, 64+2*r))
        a("v_sub_f32 v%d, v%d, v%d" % (x1, x1, 64+2*r+2))
        rnd2(a, 43, x0, x1)
        a("v_mul_f32 v%d, v%d, v%d" % (x0, x0, 64+2*r+1))
        a("v_mul_f32 v%d, v%d, v%d" % (x1, x1, 64+2*r+3))
        a("v_cvt_pk_bf16_f32 v%d, v%d, v%d" % (24+r//2, x0, x1))
    a("v_lshlrev_b32 v12, 5, v0")
    a("s_mul_i32 s3, s2, %d" % (FH*32))
    a("buffer_store_dwordx4 v[24:27], v12, s[12:15], s3 offen")
    a("buffer_store_dwordx4 v[28:31], v12, s[12:15], s3 offen offset:16")
    a.label(end)
    end_kernel(a, name, 96, 40)

SB0 = [70]
def stamp(a, i):
    if 'stamp' in EXP:
        a("s_memtime s[%d:%d]" % (SB0[0]+2*i, SB0[0]+1+2*i))
        a("s_waitcnt lgkmcnt(0)")
def stamp_out(a, n, swave=44):
    if 'stamp' not in EXP: return
    a("s_load_dwordx2 s[64:65], s[0:1], %d" % D_DBG)
    a("s_waitcnt lgkmcnt(0)")
    a("s_mov_b32 s66, 256"); a("s_mov_b32 s67, 0x20000")
    l = a.newlabel("Lst")
    a("s_cmp_lg_u32 s2, 8")
    a("s_cbranch_scc1 %s" % l)
    a("s_cmp_lg_u32 s%d, 0" % swave)
    a("s_cbranch_scc1 %s" % l)
    a("v_mov_b32 v1, 0")
    for i in range(n):
        a("s_sub_u32 s63, s%d, s%d" % (SB0[0]+2*i, SB0[0]))
        a("v_mov_b32 v2, s63")
        a("buffer_store_dword v2, v1, s[64:67], 0 offen offset:%d" % (4*i))
    a.label(l)
def gen_gemm(a, name, Pd, Qd, K, TP, TQ, nP, nQ, epi, epi_args, NS=4, WPn=2, WQn=2, xcd=None, nL=4):
    nW = WPn*WQn
    begin_kernel(a, name)
    end = a.newlabel("Lend"); lload = a.newlabel("Lload")
    gp, gq = xcd
    assert gp*gq == 8 and nQ % gq == 0
    ppg = (nP + gp - 1)//gp
    qpg = nQ//gq
    nWG = 8*ppg*qpg
    NPF = 0
    lpfw = a.newlabel("Lpfw")
    a("s_cmp_ge_u32 s2, %d" % (nWG+NPF))
    a("s_cbranch_scc1 %s" % end)
    load_ptr(a, 4, D_WS)
    sl = 6
    ptrs = {}
    for d in (Pd, Qd):
        if d[0] == 'in':
            load_ptr(a, sl, d[1]); ptrs[d[1]] = sl; sl += 2
    for slot in epi_args.get('in_slots', []):
        load_ptr(a, sl, slot); ptrs[slot] = sl; sl += 2
    assert sl <= 16
    if NPF:
        a("s_cmp_lt_u32 s2, %d" % NPF)
        a("s_cbranch_scc1 %s" % lpfw)
        a("s_sub_u32 s2, s2, %d" % NPF)
    a("s_and_b32 s40, s2, 7")
    a("s_lshr_b32 s41, s2, 3")
    a("s_and_b32 s42, s40, %d" % (gp-1))
    a("s_lshr_b32 s43, s40, %d" % int(math.log2(gp)))
    a("s_mov_b32 s45, 0x%x" % ((1 << 32)//ppg + 1))
    a("s_mul_hi_u32 s46, s41, s45")
    a("s_mul_i32 s45, s46, %d" % ppg)
    a("s_sub_u32 s45, s41, s45")
    a("s_mul_i32 s42, s42, %d" % ppg)
    a("s_add_u32 s42, s42, s45")
    a("s_mul_i32 s43, s43, %d" % qpg)
    a("s_add_u32 s43, s43, s46")
    a("s_cmp_ge_u32 s42, %d" % nP)
    a("s_cbranch_scc1 %s" % end)
    a("s_mov_b32 s39, s42")
    a("s_mul_i32 s42, s42, %d" % TP)
    if epi_args.get('short_from') is not None:
        if epi_args.get('halves'):
            a("s_lshr_b32 s37, s39, 3")
            a("s_and_b32 s39, s39, 7")
            a("s_mul_i32 s42, s39, %d" % TP)
            a("s_mul_i32 s37, s37, %d" % FH)
            a("s_add_u32 s42, s42, s37")
        a("s_sub_u32 s38, s39, %d" % epi_args['short_from'])
        a("s_max_i32 s38, s38, 0")
        a("s_lshl_b32 s38, s38, 4")
        a("s_sub_u32 s42, s42, s38")
    a("s_mul_i32 s43, s43, %d" % TQ)
    a("v_lshrrev_b32 v1, 6, v0")
    a("s_nop 0")
    a("v_readfirstlane_b32 s44, v1")
    a("v_and_b32 v2, 63, v0")
    a("v_lshrrev_b32 v5, 4, v2")
    a("s_waitcnt lgkmcnt(0)")
    stamp(a, 0)
    SB = (TP+TQ)*128
    nsteps = (K + 63)//64
    lastpartial = (K % 64) != 0
    npro = min(NS-1, nsteps)
    lpf = a.newlabel("Lpf")
    a("s_cmp_ge_u32 s44, %d" % (nW+nL))
    a("s_cbranch_scc1 %s" % lpf)
    a("s_cmp_ge_u32 s44, %d" % nW)
    a("s_cbranch_scc1 %s" % lload)
    wp, wq = TP//WPn, TQ//WQn
    nPf, nQf = wp//16, wq//16
    nH = (NS+1)//2
    VA = 8
    def vaddr(isQ, kk, half): return VA + ((2 if isQ else 0) + kk)*nH + half
    a("v_and_b32 v3, 15, v2")
    a("v_lshrrev_b32 v4, 1, v3")
    a("v_and_b32 v4, 7, v4")
    a("v_xor_b32 v4, v4, v5")
    a("v_lshlrev_b32 v4, 4, v4")
    a("v_lshl_add_u32 v4, v3, 7, v4")
    a("s_and_b32 s45, s44, %d" % (WPn-1))
    a("s_lshr_b32 s46, s44, %d" % int(math.log2(WPn)))
    a("s_mul_i32 s47, s45, %d" % (wp*128))
    a("s_mul_i32 s48, s46, %d" % (wq*128))
    a("s_add_u32 s48, s48, %d" % (TP*128))
    for isQ in (0, 1):
        for kk in range(2):
            for half in range(nH):
                v = vaddr(isQ, kk, half)
                a("v_add_u32 v%d, s%d, v4" % (v, 48 if isQ else 47))
                if kk: a("v_xor_b32 v%d, 64, v%d" % (v, v))
                if half: a("v_add_u32 v%d, %d, v%d" % (v, 2*SB*half, v))
    assert SB + max(nPf, nQf)*2048 < 65536
    VF = (VA + 4*nH + 3)//4*4
    def vPf(kk, i): return VF + (kk*nPf + i)*4
    def vQf(kk, j): return VF + (2*nPf + kk*nQf + j)*4
    VACC = VF + 2*(nPf+nQf)*4
    def acc(i, j): return VACC + (i*nQf + j)*4
    VEND = VACC + nPf*nQf*4
    for r in range(VACC, VEND):
        a("v_mov_b32 v%d, 0" % r)
    def reads(step, kk):
        if 'noread' in EXP: return
        st = step % NS
        half = st//2; soff = (st % 2)*SB
        order = [('P', 0)] + [('Q', j) for j in range(nQf)] + [('P', i) for i in range(1, nPf)]
        for (t, i) in order:
            if t == 'P':
                a("ds_read_b128 v[%d:%d], v%d offset:%d" % (vPf(kk,i), vPf(kk,i)+3, vaddr(0,kk,half), soff + i*2048))
            else:
                a("ds_read_b128 v[%d:%d], v%d offset:%d" % (vQf(kk,i), vQf(kk,i)+3, vaddr(1,kk,half), soff + i*2048))
    def mfmas(kk):
        if 'nomfma' in EXP: return
        for i in range(nPf):
            for j in range(nQf):
                a("v_mfma_f32_16x16x32_bf16 v[%d:%d], v[%d:%d], v[%d:%d], v[%d:%d]" % (
                    acc(i,j), acc(i,j)+3, vPf(kk,i), vPf(kk,i)+3, vQf(kk,j), vQf(kk,j)+3, acc(i,j), acc(i,j)+3))
    nfr = nPf + nQf
    VPRE = VEND
    ctx = dict(a=a, acc=acc, nPf=nPf, nQf=nQf, wp=wp, wq=wq, VF=VF, VACC=VACC, ptrs=ptrs, VPRE=VPRE)
    a("v_and_b32 v3, 15, v2")
    a("s_mul_i32 s47, s46, %d" % wq)
    a("s_add_u32 s47, s47, s43")
    a("v_add_u32 v3, s47, v3")
    a("v_lshrrev_b32 v4, 4, v2")
    a("v_lshlrev_b32 v4, 2, v4")
    a("s_mul_i32 s47, s45, %d" % wp)
    a("s_add_u32 s47, s47, s42")
    a("v_add_u32 v4, s47, v4")
    n0 = len(a.lines)
    VEND += epi_args['pre'](ctx, epi_args)
    deferred = a.lines[n0:]; del a.lines[n0:]
    stamp(a, 1)
    a("s_barrier")
    stamp(a, 2)
    reads(0, 0)
    for k in range(nsteps):
        has2 = not (lastpartial and k == nsteps-1)
        if has2:
            reads(k, 1)
            a("s_waitcnt lgkmcnt(%d)" % nfr)
        else:
            a("s_waitcnt lgkmcnt(0)")
        mfmas(0)
        if k+1 < nsteps:
            a("s_waitcnt lgkmcnt(0)")
            a("s_barrier")
            reads(k+1, 0)
            if k == 2: a.lines += deferred
            if has2: mfmas(1)
        elif has2:
            a("s_waitcnt lgkmcnt(0)")
            mfmas(1)
    a("s_nop 15")
    stamp(a, 3)
    if 'noepi' not in EXP: epi(ctx, epi_args)
    stamp(a, 4)
    if 'stamp' in EXP: a("s_waitcnt vmcnt(0)")
    stamp(a, 5)
    stamp_out(a, 6)
    a("s_branch %s" % end)
    a.label(lload)
    def mk(sd, d):
        if d[0] == 'in': srd_from(a, sd, ptrs[d[1]], 0, d[3])
        else: srd_from(a, sd, 4, WS[d[1]], d[3])
    mk(16, Pd); mk(20, Qd)
    assert TP % 8 == 0 and TQ % 8 == 0
    nJ = (TP+TQ)//8
    nJP = TP//8
    VD = 8
    a("v_lshrrev_b32 v3, 3, v2")
    a("v_and_b32 v4, 7, v2")
    llabs = [a.newlabel("Lld") for _ in range(nL)]
    for l in range(1, nL):
        a("s_cmp_eq_u32 s44, %d" % (nW+l))
        a("s_cbranch_scc1 %s" % llabs[l])
    nI = 0
    for l in range(nL):
        a.label(llabs[l])
        Js = list(range(l, nJ, nL))
        nI = max(nI, len(Js))
        for idx, J in enumerate(Js):
            isP = J < nJP
            JJ = J if isP else J - nJP
            pitch = Pd[2] if isP else Qd[2]
            t0 = 42 if isP else 43
            a("v_add_u32 v6, %d, v5" % ((4*JJ) % 8))
            a("v_and_b32 v6, 7, v6")
            a("v_xor_b32 v6, v6, v4")
            a("v_add_u32 v7, s%d, v3" % t0)
            if JJ: a("v_add_u32 v7, %d, v7" % (8*JJ))
            if isP and epi_args.get('pblocked'):
                a("v_lshlrev_b32 v7, 5, v7")
                a("v_lshrrev_b32 v%d, 1, v6" % (VD+idx))
                a("v_mul_u32_u24 v%d, %d, v%d" % (VD+idx, FH*32, VD+idx))
                a("v_add_u32 v7, v7, v%d" % (VD+idx))
                a("v_and_b32 v6, 1, v6")
                a("v_lshl_add_u32 v%d, v6, 4, v7" % (VD+idx))
            else:
                a("s_mov_b32 s47, %d" % pitch)
                a("v_mul_lo_u32 v7, v7, s47")
                a("v_lshl_add_u32 v%d, v6, 4, v7" % (VD+idx))
        def dma_stage(step):
            st = step % NS
            a("s_mov_b32 s50, %d" % (step*128))
            a("s_mov_b32 s51, %d" % (step*4*FH*32))
            for idx, J in enumerate(Js):
                if 'nodma' in EXP: break
                isP = J < nJP
                a("s_mov_b32 m0, %d" % (st*SB + J*1024))
                a("s_nop 0")
                a("buffer_load_dwordx4 v%d, s[%d:%d], s%d offen lds" % (VD+idx, 16 if isP else 20, 19 if isP else 23, 51 if (isP and epi_args.get('pblocked')) else 50))
        n = len(Js)
        for st in range(npro): dma_stage(st)
        issued = npro
        assert n*(NS-1) <= 63
        a("s_waitcnt vmcnt(%d)" % (n*(issued-1)))
        a("s_barrier")
        for k in range(nsteps-1):
            a("s_waitcnt vmcnt(%d)" % (n*(issued-1-(k+1))))
            a("s_barrier")
            if issued < nsteps:
                dma_stage(issued); issued += 1
        a("s_branch %s" % end)
    if NPF:
        a.label(lpfw)
        a("v_cmp_gt_u32 vcc, 64, v0")
        a("s_cbranch_vccz %s" % end)
        a("s_waitcnt lgkmcnt(0)")
        mk(16, Pd); mk(20, Qd)
        a("s_and_b32 s40, s2, 7")
        a("s_lshr_b32 s41, s2, 3")
        a("s_and_b32 s42, s40, %d" % (gp-1))
        a("s_lshr_b32 s43, s40, %d" % int(math.log2(gp)))
        QR = qpg*TQ
        rpw = QR//32
        nq = (rpw + 7)//8
        a("v_lshrrev_b32 v3, 3, v0"); a("v_and_b32 v4, 7, v0")
        a("s_mul_i32 s45, s43, %d" % QR)
        a("s_mul_i32 s46, s41, %d" % rpw)
        a("s_add_u32 s45, s45, s46")
        for i in range(nq):
            a("v_add_u32 v5, s45, v3")
            if i: a("v_add_u32 v5, %d, v5" % (8*i))
            a("s_mov_b32 s47, %d" % Qd[2])
            a("v_mul_lo_u32 v5, v5, s47")
            a("v_lshl_add_u32 v%d, v4, 4, v5" % (8+i))
        PRr = epi_args['l2pf']
        nb1k = (PRr*32 + 1023)//1024
        tot = 4*nb1k
        npp = (tot + 31)//32
        a("s_mul_i32 s48, s42, %d" % (PRr*32))
        for i in range(npp):
            a("s_add_u32 s46, s41, %d" % (32*i))
            a("s_min_u32 s46, s46, %d" % (tot-1))
            a("s_mov_b32 s47, 0x%x" % ((1 << 32)//nb1k + 1))
            a("s_mul_hi_u32 s49, s46, s47")
            a("s_mul_i32 s47, s49, %d" % nb1k)
            a("s_sub_u32 s46, s46, s47")
            a("s_mul_i32 s49, s49, %d" % (FH*32))
            a("s_lshl_b32 s46, s46, 10")
            a("s_add_u32 s49, s49, s46")
            a("s_add_u32 s49, s49, s48")
            a("v_lshlrev_b32 v5, 4, v0")
            a("v_add_u32 v%d, s49, v5" % (8+nq+i))
        a("s_mov_b32 s50, 0"); a("s_mov_b32 s51, 0"); a("s_mov_b32 s52, %d" % nsteps)
        lp = a.newlabel("Lpl")
        a.label(lp)
        for i in range(nq):
            a("buffer_load_dwordx4 v[20:23], v%d, s[20:23], s50 offen" % (8+i))
        for i in range(npp):
            a("buffer_load_dwordx4 v[20:23], v%d, s[16:19], s51 offen" % (8+nq+i))
        a("s_waitcnt vmcnt(24)")
        a("s_add_u32 s50, s50, 128"); a("s_add_u32 s51, s51, %d" % (4*FH*32))
        a("s_sub_u32 s52, s52, 1"); a("s_cmp_lg_u32 s52, 0"); a("s_cbranch_scc1 %s" % lp)
        a("s_branch %s" % end)
    a.label(lpf)
    if epi_args.get('l2pf'):
        mk(16, Pd); mk(20, Qd)
        a("s_and_b32 s40, s2, 7")
        a("s_lshr_b32 s41, s2, 3")
        a("s_and_b32 s42, s40, %d" % (gp-1))
        a("s_lshr_b32 s43, s40, %d" % int(math.log2(gp)))
        NJX = ppg*qpg
        QR = qpg*TQ
        rpw = QR//NJX
        nq = (rpw + 7)//8
        a("v_lshrrev_b32 v3, 3, v2"); a("v_and_b32 v4, 7, v2")
        a("s_mul_i32 s45, s43, %d" % QR)
        a("s_mul_i32 s46, s41, %d" % rpw)
        a("s_add_u32 s45, s45, s46")
        for i in range(nq):
            a("v_add_u32 v5, s45, v3")
            if i: a("v_add_u32 v5, %d, v5" % (8*i))
            a("s_mov_b32 s47, %d" % Qd[2])
            a("v_mul_lo_u32 v5, v5, s47")
            a("v_lshl_add_u32 v%d, v4, 4, v5" % (8+i))
        PRr = epi_args['l2pf']
        nb1k = (PRr*32 + 1023)//1024
        tot = 4*nb1k
        npp = (tot + NJX - 1)//NJX
        a("s_mul_i32 s48, s42, %d" % (PRr*32))
        for i in range(npp):
            a("s_add_u32 s46, s41, %d" % (NJX*i))
            a("s_min_u32 s46, s46, %d" % (tot-1))
            a("s_mov_b32 s47, 0x%x" % ((1 << 32)//nb1k + 1))
            a("s_mul_hi_u32 s49, s46, s47")
            a("s_mul_i32 s47, s49, %d" % nb1k)
            a("s_sub_u32 s46, s46, s47")
            a("s_mul_i32 s49, s49, %d" % (FH*32))
            a("s_lshl_b32 s46, s46, 10")
            a("s_add_u32 s49, s49, s46")
            a("s_add_u32 s49, s49, s48")
            a("v_lshlrev_b32 v5, 4, v2")
            a("v_add_u32 v%d, s49, v5" % (8+nq+i))
        def pf_stage(step):
            a("s_mov_b32 s50, %d" % (step*128)); a("s_mov_b32 s51, %d" % (step*4*FH*32))
            for i in range(nq):
                a("buffer_load_dwordx4 v[20:23], v%d, s[20:23], s50 offen" % (8+i))
            for i in range(npp):
                a("buffer_load_dwordx4 v[20:23], v%d, s[16:19], s51 offen" % (8+nq+i))
        PD0 = int(os.environ.get('PD0', '8')); PR = int(os.environ.get('PRR', '2'))
        nxt = npro
        for _ in range(PD0):
            if nxt < nsteps: pf_stage(nxt); nxt += 1
        a("s_barrier")
        for k in range(nsteps-1):
            for _ in range(PR):
                if nxt < nsteps:
                    a("s_waitcnt vmcnt(48)")
                    pf_stage(nxt); nxt += 1
            a("s_barrier")
    a.label(end)
    end_kernel(a, name, max(VEND, VD+nI), 96)
    return (nWG+NPF, 64*(nW+nL+(1 if epi_args.get('l2pf') else 0)), NS*SB)

def pre_g1(c, args):
    a = c['a']
    srd_from(a, 24, 4, WS['Z'], S*F*2)
    a("v_mul_u32_u24 v5, %d, v3" % (F*2))
    a("v_lshl_add_u32 v5, v4, 1, v5")
    return 0

def epi_g1(c, args):
    a = c['a']
    T = c['VF']
    K0 = T; K1 = T+2; ONE = T+4
    a("v_mov_b32 v%d, 0x%08x" % (K0, f2u(-2.302208198))); a("v_mov_b32 v%d, 0x%08x" % (K0+1, f2u(-2.302208198)))
    a("v_mov_b32 v%d, 0x%08x" % (K1, f2u(-2.302208198*0.044715))); a("v_mov_b32 v%d, 0x%08x" % (K1+1, f2u(-2.302208198*0.044715)))
    a("v_mov_b32 v%d, 1.0" % ONE); a("v_mov_b32 v%d, 1.0" % (ONE+1))
    U = T+8
    for j in range(c['nQf']):
        for i in range(c['nPf']):
            r = c['acc'](i, j)
            rnd2(a, U+4, r, r+1); rnd2(a, U+4, r+2, r+3)
            for h in range(2):
                x = r+2*h; t = U+2*h
                a("v_pk_mul_f32 v[%d:%d], v[%d:%d], v[%d:%d]" % (t, t+1, x, x+1, x, x+1))
                a("v_pk_fma_f32 v[%d:%d], v[%d:%d], v[%d:%d], v[%d:%d]" % (t, t+1, t, t+1, K1, K1+1, K0, K0+1))
                a("v_pk_mul_f32 v[%d:%d], v[%d:%d], v[%d:%d]" % (t, t+1, t, t+1, x, x+1))
            for e in range(4):
                a("v_exp_f32 v%d, v%d" % (U+e, U+e))
            a("s_nop 0")
            for h in range(2):
                t = U+2*h
                a("v_pk_add_f32 v[%d:%d], v[%d:%d], v[%d:%d]" % (t, t+1, t, t+1, ONE, ONE+1))
            for e in range(4):
                a("v_rcp_f32 v%d, v%d" % (U+e, U+e))
            a("s_nop 0")
            for h in range(2):
                x = r+2*h; t = U+2*h
                a("v_pk_mul_f32 v[%d:%d], v[%d:%d], v[%d:%d]" % (x, x+1, x, x+1, t, t+1))
            a("v_cvt_pk_bf16_f32 v%d, v%d, v%d" % (r, r, r+1))
            a("v_cvt_pk_bf16_f32 v%d, v%d, v%d" % (r+1, r+2, r+3))
            sk = None
            if args.get('short_from') is not None and i == c['nPf']-1:
                sk = a.newlabel("Lsk")
                a("s_cmp_ge_u32 s39, %d" % args['short_from'])
                a("s_cbranch_scc1 %s" % sk)
            a("buffer_store_dwordx2 v[%d:%d], v5, s[24:27], 0 offen offset:%d" % (r, r+1, i*32))
            if sk: a.label(sk)
        a("v_add_u32 v5, %d, v5" % (16*F*2))

def pre_g2(c, args):
    a = c['a']
    srd_from(a, 24, 4, WS['Z'], S*F*2)
    srd_from(a, 28, 4, WS['H'], S*FH*2)
    srd_from(a, 32, c['ptrs'][B_BSP], 0, S*2)
    a("v_mul_u32_u24 v5, %d, v3" % (F*2))
    a("v_lshl_add_u32 v5, v4, 1, v5")
    a("v_mul_u32_u24 v6, %d, v3" % (FH*2))
    a("v_lshl_add_u32 v6, v4, 1, v6")
    a("v_lshlrev_b32 v7, 1, v3")
    T = c['VPRE']
    nPf, nQf = c['nPf'], c['nQf']
    for j in range(nQf):
        a("buffer_load_ushort v%d, v7, s[32:35], 0 offen offset:%d" % (T+j, 32*j))
    for j in range(nQf):
        for i in range(nPf):
            z = T+4+(j*nPf+i)*2
            a("buffer_load_dwordx2 v[%d:%d], v5, s[24:27], 0 offen offset:%d" % (z, z+1, i*32))
        a("v_add_u32 v5, %d, v5" % (16*F*2))
    return 4 + nPf*nQf*2

def epi_g2(c, args):
    a = c['a']
    T = c['VPRE']
    nPf, nQf = c['nPf'], c['nQf']
    a("s_waitcnt vmcnt(0)")
    U = c['VF']
    for j in range(nQf):
        a("v_lshlrev_b32 v%d, 16, v%d" % (T+j, T+j))
        for i in range(nPf):
            r = c['acc'](i, j); z = T+4+(j*nPf+i)*2
            rnd2(a, U, r, r+1); rnd2(a, U, r+2, r+3)
            for e in range(4):
                a("v_add_f32 v%d, v%d, v%d" % (r+e, r+e, T+j))
            rnd2(a, U, r, r+1); rnd2(a, U, r+2, r+3)
            unpack(a, U, U+1, z); unpack(a, U+2, U+3, z+1)
            for h in range(2):
                a("v_pk_mul_f32 v[%d:%d], v[%d:%d], v[%d:%d]" % (r+2*h, r+2*h+1, r+2*h, r+2*h+1, U+2*h, U+2*h+1))
            a("v_cvt_pk_bf16_f32 v%d, v%d, v%d" % (r, r, r+1))
            a("v_cvt_pk_bf16_f32 v%d, v%d, v%d" % (r+1, r+2, r+3))
            sk = None
            if args.get('short_from') is not None and i == nPf-1:
                sk = a.newlabel("Lsk")
                a("s_cmp_ge_u32 s39, %d" % args['short_from'])
                a("s_cbranch_scc1 %s" % sk)
            a("buffer_store_dwordx2 v[%d:%d], v6, s[28:31], 0 offen offset:%d" % (r, r+1, i*32))
            if sk: a.label(sk)
        a("v_add_u32 v6, %d, v6" % (16*FH*2))

def pre_g3(c, args):
    a = c['a']
    srd_from(a, 24, 4, WS[args['xin']], S*D*2)
    if args['out'] == 'dout':
        srd_from(a, 28, c['ptrs'][D_OUT], 0, S*D*2)
    else:
        srd_from(a, 28, 4, WS[args['out']], S*D*2)
    a("v_mul_u32_u24 v5, %d, v3" % (D*2))
    a("v_lshl_add_u32 v5, v4, 1, v5")
    a("v_mov_b32 v6, v5")
    T = c['VPRE']
    nPf, nQf = c['nPf'], c['nQf']
    for j in range(nQf):
        for i in range(nPf):
            z = T+(j*nPf+i)*2
            a("buffer_load_dwordx2 v[%d:%d], v5, s[24:27], 0 offen offset:%d" % (z, z+1, i*32))
        a("v_add_u32 v5, %d, v5" % (16*D*2))
    return nPf*nQf*2

def epi_g3(c, args):
    a = c['a']
    T = c['VPRE']
    nPf, nQf = c['nPf'], c['nQf']
    a("s_waitcnt vmcnt(0)")
    U = c['VF']
    for j in range(nQf):
        for i in range(nPf):
            r = c['acc'](i, j); z = T+(j*nPf+i)*2
            rnd2(a, U, r, r+1); rnd2(a, U, r+2, r+3)
            unpack(a, U, U+1, z); unpack(a, U+2, U+3, z+1)
            for h in range(2):
                a("v_pk_add_f32 v[%d:%d], v[%d:%d], v[%d:%d]" % (r+2*h, r+2*h+1, r+2*h, r+2*h+1, U+2*h, U+2*h+1))
            a("v_cvt_pk_bf16_f32 v%d, v%d, v%d" % (r, r, r+1))
            a("v_cvt_pk_bf16_f32 v%d, v%d, v%d" % (r+1, r+2, r+3))
            a("buffer_store_dwordx2 v[%d:%d], v6, s[28:31], 0 offen offset:%d" % (r, r+1, i*32))
        a("v_add_u32 v6, %d, v6" % (16*D*2))

NKV = S//32
NT_IN = (D//32)*(F//64)
NT_OUT = (FH//32)*(D//64)
COPYSZ = 4160
KVSZ = 96*80
KVIMG = 64*80
CHSZ = 8*COPYSZ + KVSZ
PR_ROWS = 16
def gen_prepa(a, name):
    begin_kernel(a, name)
    end = a.newlabel("Lend"); lw = a.newlabel("Lwarm")
    a("s_cmp_ge_u32 s2, %d" % (S//PR_ROWS + 128))
    a("s_cbranch_scc1 %s" % end)
    a("s_cmp_ge_u32 s2, %d" % (S//PR_ROWS))
    a("s_cbranch_scc1 %s" % lw)
    load_ptr(a, 4, D_WS)
    load_ptr(a, 6, A_K); load_ptr(a, 8, A_V); load_ptr(a, 10, A_SHK)
    a("s_waitcnt lgkmcnt(0)")
    srd_from(a, 16, 6, 0, S*D*2)
    srd_from(a, 20, 8, 0, S*D*2)
    srd_from(a, 24, 10, 0, D*8)
    srd_from(a, 28, 4, WS['KVR'], D*KVIMG)
    R = PR_ROWS
    a("s_mul_i32 s3, s2, %d" % (R*D*2))
    a("v_lshlrev_b32 v1, 2, v0")
    a("v_add_u32 v1, s3, v1")
    a("v_subrev_u32 v2, %d, v1" % (3*D*2))
    a("v_lshlrev_b32 v3, 4, v0")
    a("buffer_load_dwordx4 v[4:7], v3, s[24:27], 0 offen")
    KB = 16; VB = KB + R + 3
    def ld(dst, vbase, i, srd):
        if i % 3 == 0 and i:
            a("v_add_u32 v%d, %d, v%d" % (vbase, 3*1280, vbase))
        a("buffer_load_dword v%d, v%d, s[%d:%d], 0 offen offset:%d" % (dst, vbase, srd, srd+3, (i % 3)*1280))
    for i in range(R+3): ld(KB+i, 2, i, 16)
    for i in range(R): ld(VB+i, 1, i, 20)
    a("s_waitcnt vmcnt(0)")
    W = 60; K0 = 70; K1 = K0 + R + 3; O0 = K1 + R + 3; O1 = O0 + R
    for ch in range(2):
        for t in range(4):
            src = 4 + 2*ch + t//2
            if t % 2 == 0: a("v_lshlrev_b32 v%d, 16, v%d" % (W+4*ch+t, src))
            else: a("v_and_b32 v%d, 0xffff0000, v%d" % (W+4*ch+t, src))
    for i in range(R+3): unpack(a, K0+i, K1+i, KB+i)
    for r in range(R):
        for t in range(4):
            a("v_mul_f32 v8, v%d, v%d" % (W+3-t, K0+r+t))
            a("v_mul_f32 v9, v%d, v%d" % (W+4+3-t, K1+r+t))
            rnd2(a, 10, 8, 9)
            if t == 0:
                a("v_mov_b32 v%d, v8" % (O0+r)); a("v_mov_b32 v%d, v9" % (O1+r))
            else:
                a("v_add_f32 v%d, v%d, v8" % (O0+r, O0+r)); a("v_add_f32 v%d, v%d, v9" % (O1+r, O1+r))
                rnd2(a, 10, O0+r, O1+r)
        unpack(a, 8, 9, VB+r)
        a("v_mul_f32 v%d, v%d, v8" % (O0+r, O0+r)); a("v_mul_f32 v%d, v%d, v9" % (O1+r, O1+r))
    for ch in range(2):
        b = O0 if ch == 0 else O1
        for m in range(R//2):
            a("v_cvt_pk_bf16_f32 v%d, v%d, v%d" % (16+8*ch+m, b+R-1-2*m, b+R-2-2*m))
    a("s_lshr_b32 s3, s2, 1")
    a("s_mul_i32 s3, s3, %d" % (D*64))
    a("s_and_b32 s12, s2, 1")
    a("s_xor_b32 s12, s12, 1")
    a("s_lshl_b32 s12, s12, 5")
    a("s_add_u32 s3, s3, s12")
    a("v_lshlrev_b32 v3, 7, v0")
    a("v_add_u32 v3, s3, v3")
    for ch in range(2):
        for m in range(2):
            a("buffer_store_dwordx4 v[%d:%d], v3, s[28:31], 0 offen offset:%d" % (16+8*ch+4*m, 19+8*ch+4*m, 64*ch+16*m))
    a("s_branch %s" % end)
    a.label(lw)
    load_ptr(a, 4, A_SSMK); load_ptr(a, 6, B_WIN); load_ptr(a, 8, B_WOUT); load_ptr(a, 10, A_Q)
    a("s_waitcnt lgkmcnt(0)")
    srd_from(a, 16, 4, 0, D*S*2); srd_from(a, 20, 6, 0, D*F*2); srd_from(a, 24, 8, 0, FH*D*2); srd_from(a, 28, 10, 0, S*D*2)
    a("s_sub_u32 s3, s2, %d" % (S//PR_ROWS))
    a("s_mul_i32 s3, s3, %d" % (5*5120))
    a("v_lshlrev_b32 v1, 4, v0")
    for i in range(5):
        for sd in (16, 20, 24, 28):
            a("buffer_load_dwordx4 v[8:11], v1, s[%d:%d], s3 offen" % (sd, sd+3))
        a("s_add_u32 s3, s3, 5120")
    a.label(end)
    end_kernel(a, name, O1+R, 40)

NCH = 4
NTRW = 96
def gen_conv(a, name):
    begin_kernel(a, name)
    end = a.newlabel("Lend"); ltr = a.newlabel("Ltr")
    a("s_cmp_ge_u32 s2, %d" % (D//NCH + NTRW))
    a("s_cbranch_scc1 %s" % end)
    load_ptr(a, 4, D_WS)
    a("s_cmp_ge_u32 s2, %d" % (D//NCH))
    a("s_cbranch_scc1 %s" % ltr)
    load_ptr(a, 12, A_SSMK); load_ptr(a, 14, A_SSMD)
    a("s_waitcnt lgkmcnt(0)")
    srd_from(a, 16, 4, WS['KVR'], D*KVIMG)
    a("s_lshl_b32 s3, s2, 3")
    a("s_add_u32 s14, s14, s3"); a("s_addc_u32 s15, s15, 0")
    a("s_load_dwordx2 s[44:45], s[14:15], 0")
    srd_from(a, 24, 12, 0, D*S*2)
    srd_from(a, 28, 4, WS['Y'], S*D*2)
    a("v_lshrrev_b32 v1, 6, v0")
    a("s_nop 0")
    a("v_readfirstlane_b32 s46, v1")
    a("v_and_b32 v2, 63, v0")
    a("s_and_b32 s47, s46, 3")
    a("s_lshr_b32 s48, s46, 2")
    a("s_mul_i32 s49, s47, %d" % CHSZ)
    SB0[0] = 88
    stamp(a, 0)
    a("s_lshl_b32 s3, s2, 2")
    a("s_add_u32 s3, s3, s47")
    a("s_lshl_b32 s50, s3, 6")
    a("s_mul_i32 s51, s48, 3072")
    a("s_add_u32 s51, s51, s49")
    a("s_add_u32 s51, s51, %d" % (8*COPYSZ))
    a("s_mul_i32 s52, s48, 192")
    for pc in range(3):
        a("v_add_u32 v4, s52, v2")
        if pc: a("v_add_u32 v4, %d, v4" % (64*pc))
        a("v_mul_u32_u24 v5, 0x%x, v4" % 52429)
        a("v_lshrrev_b32 v5, 18, v5")
        a("v_mul_u32_u24 v6, 5, v5")
        a("v_sub_u32 v6, v4, v6")
        a("v_min_u32 v6, 3, v6")
        a("v_sub_u32 v5, 63, v5")
        a("v_mul_u32_u24 v5, %d, v5" % (D*64))
        a("v_lshl_add_u32 v%d, v6, 4, v5" % (90+pc))
    sk = a.newlabel("Lsk")
    for pc in range(3):
        if pc == 2:
            a("s_cmp_eq_u32 s48, 1")
            a("s_cbranch_scc1 %s" % sk)
        a("s_add_u32 m0, s51, %d" % (1024*pc))
        a("s_nop 0")
        a("buffer_load_dwordx4 v%d, s[16:19], s50 offen lds" % (90+pc))
    a.label(sk)
    for r in range(4): a("v_mov_b32 v%d, 0" % (84+r))
    for rnd in range(2):
        if rnd:
            a("v_cmp_gt_u32 vcc, 128, v0")
            a("s_and_saveexec_b64 s[58:59], vcc")
        a("v_add_u32 v4, %d, v0" % (512*rnd))
        a("v_mul_u32_u24 v5, 0x%x, v4" % 52429)
        a("v_lshrrev_b32 v5, 23, v5")
        a("v_mul_u32_u24 v6, 160, v5")
        a("v_sub_u32 v6, v4, v6")
        a("v_mul_u32_u24 v5, %d, v5" % CHSZ)
        a("v_lshl_add_u32 v5, v6, 4, v5")
        a("v_add_u32 v5, %d, v5" % (8*COPYSZ + 64*80))
        a("ds_write_b128 v5, v[84:87]")
        if rnd: a("s_mov_b64 exec, -1")
    a("s_lshl_b32 s3, s2, 14")
    for i in range(3):
        b = 12 + 8*i
        for r in range(8): a("v_mov_b32 v%d, 0" % (b+r))
        a("v_add_u32 v4, %d, v0" % (512*i))
        a("v_mul_u32_u24 v5, 0x%x, v4" % 64528)
        a("v_lshrrev_b32 v5, 24, v5")
        a("v_mul_u32_u24 v6, 260, v5")
        a("v_sub_u32 v6, v4, v6")
        a("v_mul_u32_u24 v7, %d, v5" % CHSZ)
        a("v_lshl_add_u32 v%d, v6, 4, v7" % (40+i))
        a("v_lshlrev_b32 v7, 12, v5")
        a("v_add_u32 v7, s3, v7")
        a("v_subrev_u32 v9, 4, v6")
        a("v_lshl_add_u32 v10, v9, 4, v7")
        a("v_cmp_gt_u32 s[60:61], 4, v5")
        a("v_cmp_gt_u32 vcc, 256, v9")
        a("s_and_b64 vcc, vcc, s[60:61]")
        a("s_and_saveexec_b64 s[62:63], vcc")
        a("buffer_load_dwordx4 v[%d:%d], v10, s[24:27], 0 offen" % (b, b+3))
        a("s_mov_b64 exec, -1")
        a("v_add_u32 v9, 1, v9")
        a("v_cmp_gt_u32 vcc, 256, v9")
        a("s_and_b64 vcc, vcc, s[60:61]")
        a("s_and_saveexec_b64 s[62:63], vcc")
        a("buffer_load_dwordx4 v[%d:%d], v10, s[24:27], 0 offen offset:16" % (b+4, b+7))
        a("s_mov_b64 exec, -1")
    stamp(a, 1)
    a("s_waitcnt vmcnt(0) lgkmcnt(0)")
    stamp(a, 2)
    for i in range(3):
        b = 12 + 8*i
        skip = a.newlabel("Lsk")
        if i == 2:
            a("v_cmp_gt_u32 vcc, 16, v0")
            a("s_and_saveexec_b64 s[58:59], vcc")
            a("s_cbranch_execz %s" % skip)
        for r in range(8):
            sh = 1 + r
            o = 44 + 4*(r % 2)
            for m in range(4):
                if sh % 2 == 0:
                    a("v_mov_b32 v%d, v%d" % (o+m, b + sh//2 + m))
                else:
                    lo = b + (sh-1)//2 + m
                    a("v_alignbit_b32 v%d, v%d, v%d, 16" % (o+m, lo+1, lo))
            a("ds_write_b128 v%d, v[%d:%d] offset:%d" % (40+i, o, o+3, r*COPYSZ))
        if i == 2:
            a.label(skip)
            a("s_mov_b64 exec, -1")
    a("s_waitcnt vmcnt(0) lgkmcnt(0)")
    stamp(a, 3)
    a("s_barrier")
    stamp(a, 4)
    a("v_and_b32 v3, 31, v2")
    a("v_lshrrev_b32 v4, 5, v2")
    a("v_and_b32 v5, 7, v3")
    a("v_mul_u32_u24 v5, %d, v5" % COPYSZ)
    a("v_and_b32 v6, 24, v3")
    a("v_lshl_add_u32 v6, v4, 3, v6")
    a("v_lshl_add_u32 v5, v6, 1, v5")
    a("v_add_u32 v5, s49, v5")
    a("s_lshl_b32 s52, s48, 5")
    a("v_add_u32 v7, s52, v3")
    a("v_sub_u32 v8, 63, v7")
    a("v_mul_u32_u24 v8, 80, v8")
    a("v_lshl_add_u32 v8, v4, 4, v8")
    a("v_add_u32 v8, s49, v8")
    a("v_add_u32 v8, %d, v8" % (8*COPYSZ))
    for r in range(16): a("v_mov_b32 v%d, 0" % (96+r))
    a("s_lshl_b32 s53, s48, 3")
    a("s_add_u32 s53, s53, 8")
    UN = 2
    def rd(setb, cbase):
        for c in range(UN):
            for kb in range(2):
                idx = c*2+kb
                a("ds_read_b128 v[%d:%d], v5 offset:%d" % (setb+idx*4, setb+idx*4+3, (cbase+c)*64 + kb*32))
                a("ds_read_b128 v[%d:%d], v8 offset:%d" % (setb+16+idx*4, setb+16+idx*4+3, (cbase+c)*80 + kb*32))
    def mm(setb):
        for idx in range(2*UN):
            a("v_mfma_f32_32x32x16_bf16 v[96:111], v[%d:%d], v[%d:%d], v[96:111]" % (setb+idx*4, setb+idx*4+3, setb+16+idx*4, setb+16+idx*4+3))
    rd(32, 0)
    loop = a.newlabel("Lconv")
    a.label(loop)
    rd(64, UN)
    a("s_waitcnt lgkmcnt(8)")
    mm(32)
    rd(32, 2*UN)
    a("s_waitcnt lgkmcnt(8)")
    mm(64)
    a("v_add_u32 v5, %d, v5" % (2*UN*64))
    a("v_add_u32 v8, %d, v8" % (2*UN*80))
    a("s_sub_u32 s53, s53, 1")
    a("s_cmp_lg_u32 s53, 0")
    a("s_cbranch_scc1 %s" % loop)
    a("s_waitcnt lgkmcnt(0)")
    a("s_nop 15")
    stamp(a, 5)
    a("v_sub_u32 v9, 63, v7")
    a("v_mul_u32_u24 v9, 80, v9")
    a("v_add_u32 v9, s49, v9")
    a("v_lshlrev_b32 v10, 3, v4")
    a("v_sub_u32 v9, v9, v10")
    a("v_add_u32 v9, %d, v9" % (8*COPYSZ + 2*28 - 48))
    for rq in range(4):
        a("ds_read_b64 v[%d:%d], v9 offset:%d" % (48+2*rq, 49+2*rq, 48 - 16*rq))
    a("s_lshr_b32 s54, s47, 1")
    a("s_cmp_eq_u32 s54, 0")
    a("s_cselect_b32 s54, s44, s45")
    a("s_lshl_b32 s55, s54, 16")
    a("s_and_b32 s54, s54, 0xffff0000")
    a("s_and_b32 s56, s47, 1")
    a("s_cmp_eq_u32 s56, 0")
    a("s_cselect_b32 s54, s55, s54")
    a("s_waitcnt lgkmcnt(0)")
    for rq in range(4):
        r = 96+4*rq
        unpack(a, 59, 58, 48+2*rq)
        unpack(a, 57, 56, 49+2*rq)
        for e in range(4):
            a("v_mul_f32 v%d, s54, v%d" % (56+e, 56+e))
        rnd2(a, 60, 56, 57); rnd2(a, 60, 58, 59)
        rnd2(a, 60, r, r+1); rnd2(a, 60, r+2, r+3)
        for e in range(4):
            a("v_add_f32 v%d, v%d, v%d" % (r+e, r+e, 56+e))
        a("v_cvt_pk_bf16_f32 v%d, v%d, v%d" % (r, r, r+1))
        a("v_cvt_pk_bf16_f32 v%d, v%d, v%d" % (r+1, r+2, r+3))
    a("s_barrier")
    a("v_lshlrev_b32 v11, 5, v7")
    a("v_lshl_add_u32 v11, v4, 2, v11")
    a("v_lshlrev_b32 v11, 3, v11")
    a("v_lshl_add_u32 v11, v7, 3, v11")
    a("s_lshl_b32 s56, s47, 1")
    a("v_add_u32 v11, s56, v11")
    for rq in range(4):
        r = 96+4*rq
        a("ds_write_b16 v11, v%d offset:%d" % (r, 64*rq))
        a("ds_write_b16_d16_hi v11, v%d offset:%d" % (r, 64*rq+8))
        a("ds_write_b16 v11, v%d offset:%d" % (r+1, 64*rq+16))
        a("ds_write_b16_d16_hi v11, v%d offset:%d" % (r+1, 64*rq+24))
    a("s_waitcnt lgkmcnt(0)")
    a("s_barrier")
    a("v_lshlrev_b32 v12, 3, v0")
    a("v_lshrrev_b32 v14, 5, v0")
    a("v_lshl_add_u32 v14, v14, 3, v12")
    for i in range(4):
        a("ds_read_b64 v[%d:%d], v14 offset:%d" % (16+2*i, 17+2*i, (4096+128)*i))
    a("s_lshl_b32 s3, s2, 14")
    a("v_add_u32 v13, s3, v12")
    for i in range(4):
        a("s_waitcnt lgkmcnt(%d)" % (3-i))
        a("buffer_store_dwordx2 v[%d:%d], v13, s[28:31], 0 offen" % (16+2*i, 17+2*i))
        a("v_add_u32 v13, 0x%x, v13" % 4096)
    if 'stamp' in EXP: a("s_waitcnt vmcnt(0)")
    stamp(a, 6)
    stamp_out(a, 7, 46)
    SB0[0] = 70
    a("s_branch %s" % end)
    a.label(ltr)
    load_ptr(a, 6, B_WIN); load_ptr(a, 8, B_WOUT)
    a("s_waitcnt lgkmcnt(0)")
    srd_from(a, 16, 6, 0, D*F*2)
    srd_from(a, 20, 4, WS['WINT'], D*F*2)
    srd_from(a, 24, 8, 0, D*FH*2)
    srd_from(a, 28, 4, WS['WOUTT'], D*FH*2)
    a("v_lshrrev_b32 v20, 8, v0")
    a("v_and_b32 v21, 255, v0")
    a("v_lshrrev_b32 v1, 3, v21")
    a("v_and_b32 v2, 7, v21")
    a("v_mul_u32_u24 v4, 640, v2")
    a("v_lshl_add_u32 v4, v1, 1, v4")
    a("v_mul_u32_u24 v22, 5120, v20")
    a("v_add_u32 v4, v4, v22")
    a("v_lshrrev_b32 v5, 2, v21")
    a("v_and_b32 v6, 3, v21")
    a("v_mul_u32_u24 v7, 80, v5")
    a("v_lshl_add_u32 v7, v6, 4, v7")
    a("v_add_u32 v7, v7, v22")
    a("s_sub_u32 s3, s2, %d" % (D//NCH))
    a("s_lshl_b32 s3, s3, 1")
    a("v_add_u32 v23, s3, v20")
    NT = NT_IN + NT_OUT
    NIT = (NT + 2*NTRW - 1)//(2*NTRW)
    for it in range(NIT):
        m_in = 40 + 4*it; m_out = 42 + 4*it
        a("v_cmp_gt_u32 vcc, %d, v23" % NT_IN)
        a("s_mov_b64 s[80:81], vcc")
        a("v_cmp_gt_u32 vcc, %d, v23" % NT)
        a("s_mov_b64 s[82:83], vcc")
        a("v_subrev_u32 v24, %d, v23" % NT_IN)
        a("v_cndmask_b32 v24, v24, v23, s[80:81]")
        a("v_mul_u32_u24 v25, 0x%x, v24" % ((1 << 20)//27 + 1)); a("v_lshrrev_b32 v25, 20, v25")
        a("v_mul_u32_u24 v26, 0x%x, v24" % ((1 << 20)//10 + 1)); a("v_lshrrev_b32 v26, 20, v26")
        a("v_cndmask_b32 v25, v26, v25, s[80:81]")
        a("v_mov_b32 v26, 10"); a("v_cndmask_b32 v26, v26, 27, s[80:81]")
        a("v_mul_u32_u24 v26, v26, v25"); a("v_sub_u32 v26, v24, v26")
        a("v_mov_b32 v27, %d" % (D*2)); a("v_mov_b32 v28, %d" % (F*2)); a("v_cndmask_b32 v27, v27, v28, s[80:81]")
        a("v_mov_b32 v28, %d" % (FH*2)); a("v_mov_b32 v29, %d" % (D*2)); a("v_cndmask_b32 v28, v28, v29, s[80:81]")
        a("v_lshl_add_u32 v29, v25, 5, v1")
        a("v_mul_lo_u32 v29, v29, v27")
        a("v_lshl_add_u32 v29, v2, 4, v29")
        a("v_lshl_add_u32 v29, v26, 7, v29")
        vo = 32 + it
        a("v_lshl_add_u32 v%d, v26, 6, v5" % vo)
        a("v_mul_lo_u32 v%d, v%d, v28" % (vo, vo))
        a("v_lshl_add_u32 v%d, v6, 4, v%d" % (vo, vo))
        a("v_lshl_add_u32 v%d, v25, 6, v%d" % (vo, vo))
        a("s_and_b64 s[%d:%d], s[80:81], s[82:83]" % (m_in, m_in+1))
        a("s_andn2_b64 s[%d:%d], s[82:83], s[80:81]" % (m_out, m_out+1))
        vd = 40 + 4*it
        a("s_mov_b64 exec, s[%d:%d]" % (m_in, m_in+1))
        a("buffer_load_dwordx4 v[%d:%d], v29, s[16:19], 0 offen" % (vd, vd+3))
        a("s_mov_b64 exec, s[%d:%d]" % (m_out, m_out+1))
        a("buffer_load_dwordx4 v[%d:%d], v29, s[24:27], 0 offen" % (vd, vd+3))
        a("s_mov_b64 exec, -1")
        a("v_add_u32 v23, %d, v23" % (2*NTRW))
    a("s_waitcnt vmcnt(0)")
    for it in range(NIT):
        vd = 40 + 4*it
        for e in range(8):
            if e % 2 == 0: a("ds_write_b16 v4, v%d offset:%d" % (vd+e//2, e*80 + it*10240))
            else: a("ds_write_b16_d16_hi v4, v%d offset:%d" % (vd+e//2, e*80 + it*10240))
    a("s_waitcnt lgkmcnt(0)")
    a("s_barrier")
    for it in range(NIT):
        vd = 40 + 4*it
        a("ds_read_b128 v[%d:%d], v7 offset:%d" % (vd, vd+3, it*10240))
    for it in range(NIT):
        vd = 40 + 4*it; vo = 32 + it
        m_in = 40 + 4*it; m_out = 42 + 4*it
        a("s_waitcnt lgkmcnt(%d)" % (NIT-1-it))
        a("s_mov_b64 exec, s[%d:%d]" % (m_in, m_in+1))
        a("buffer_store_dwordx4 v[%d:%d], v%d, s[20:23], 0 offen" % (vd, vd+3, vo))
        a("s_mov_b64 exec, s[%d:%d]" % (m_out, m_out+1))
        a("buffer_store_dwordx4 v[%d:%d], v%d, s[28:31], 0 offen" % (vd, vd+3, vo))
        a("s_mov_b64 exec, -1")
    if 'nowarm' not in EXP:
        load_ptr(a, 6, B_WSP)
        a("s_waitcnt lgkmcnt(0)")
        srd_from(a, 16, 6, 0, S*S*2)
        a("s_sub_u32 s3, s2, %d" % (D//NCH))
        a("s_mul_i32 s3, s3, %d" % (11*8192))
        a("v_lshlrev_b32 v1, 4, v0")
        for i in range(11):
            a("buffer_load_dwordx4 v[8:11], v1, s[16:19], s3 offen")
            a("s_add_u32 s3, s3, 8192")
    a.label(end)
    end_kernel(a, name, 176, 102)

def main():
    a = Asm()
    launches = []
    gen_prepa(a, "prepa_kernel"); launches.append(("prepa_kernel", S//PR_ROWS + 128, 320, 0))
    gen_conv(a, "conv_kernel"); launches.append(("conv_kernel", D//NCH + NTRW, 512, NCH*CHSZ))
    gen_e(a, "e1_kernel", (('in', A_Q), 'X1'))
    gen_e(a, "e2_kernel", (('ws', 'X2'), 'X3'))
    if 'g1old' in EXP:
        l1 = gen_gemm(a, "g1_kernel", ('ws', 'WINT', D*2, F*D*2), ('ws', 'XN', D*2, S*D*2), D, 192, 128, F//192, S//128, epi_g1, {'pre': pre_g1}, NS=4, WPn=4, WQn=2, xcd=(2,4))
    else:
        l1 = gen_gemm(a, "g1_kernel", ('ws', 'WINT', D*2, F*D*2+32768), ('ws', 'XN', D*2, S*D*2), D, 112, 128, 16, S//128, epi_g1, {'pre': pre_g1, 'short_from': 6, 'halves': True}, NS=5, WPn=1, WQn=int(os.environ.get('WQ1','4')), xcd=(4,2))
    gen_ln2(a, "ln2_kernel")
    l2 = gen_gemm(a, "g2_kernel", ('ws', 'Z2T', S*2, FH*S*2+4096), ('in', B_WSP, S*2, S*S*2), S, 112, 64, 8, S//64, epi_g2, {'in_slots': [B_BSP], 'pblocked': True, 'pre': pre_g2, 'short_from': 6, 'l2pf': (448 if 'l2' in EXP else 0)}, NS=int(os.environ.get('NS2','6')), WPn=1, WQn=WQ2, nL=NLG, xcd=(int(os.environ.get('GP2','2')), 8//int(os.environ.get('GP2','2'))))
    l3 = gen_gemm(a, "g3a_kernel", ('ws', 'WOUTT', FH*2, D*FH*2+4096), ('ws', 'H', FH*2, S*FH*2+4096), FH, 80, 64, D//80, S//64, epi_g3, {'xin': 'X1', 'out': 'X2', 'pre': pre_g3}, NS=int(os.environ.get('NS3','7')), WPn=1, WQn=WQ3, nL=NLG, xcd=(int(os.environ.get('GP3','2')), 8//int(os.environ.get('GP3','2'))))
    gen_gemm(a, "g3b_kernel", ('ws', 'WOUTT', FH*2, D*FH*2+4096), ('ws', 'H', FH*2, S*FH*2+4096), FH, 80, 64, D//80, S//64, epi_g3, {'xin': 'X3', 'out': 'dout', 'in_slots': [D_OUT], 'pre': pre_g3}, NS=int(os.environ.get('NS3','7')), WPn=1, WQn=WQ3, nL=NLG, xcd=(int(os.environ.get('GP3','2')), 8//int(os.environ.get('GP3','2'))))
    for lay in range(2):
        launches.append(("e%d_kernel" % (lay+1), S//16, 1024, 160*144))
        launches.append(("g1_kernel",) + l1)
        launches.append(("ln2_kernel", S//LN2_ROWS, 1024, 256))
        launches.append(("g2_kernel",) + l2)
        launches.append(("g3a_kernel" if lay == 0 else "g3b_kernel",) + l3)
    nl = int(sys.argv[2]) if len(sys.argv) > 2 else len(launches)
    out = []
    for (k, g, b, l) in launches[:nl]:
        out.append("; @launch kernel=%s grid=(%d,1,1) block=(%d,1,1) lds=%d" % (k, g, b, l))
    out.append('.amdgcn_target "amdgcn-amd-amdhsa--gfx950"')
    out.append(".text")
    out += a.lines
    out.append('.section .rodata,"a"')
    for (k, nv, ns) in a.kernels:
        nv8 = (nv + 7)//8*8
        out.append(".p2align 6")
        out.append(".amdhsa_kernel %s" % k)
        out.append("  .amdhsa_next_free_vgpr %d" % nv8)
        out.append("  .amdhsa_next_free_sgpr %d" % ns)
        out.append("  .amdhsa_accum_offset %d" % nv8)
        out.append("  .amdhsa_group_segment_fixed_size 0")
        out.append("  .amdhsa_kernarg_size 112")
        out.append("  .amdhsa_user_sgpr_count 2")
        out.append("  .amdhsa_user_sgpr_kernarg_segment_ptr 1")
        out.append("  .amdhsa_system_sgpr_workgroup_id_x 1")
        out.append(".end_amdhsa_kernel")
    open(sys.argv[1], "w").write("\n".join(out) + "\n")
    import json
    json.dump(WS, open(sys.argv[1] + ".ws.json", "w"))

if __name__ == "__main__":
    main()
```
